```python
import torch

def _softmax(x, axis=-1):
    return torch.softmax(x, dim=axis)
def _gelu(x):
    return torch.nn.functional.gelu(x, approximate="tanh")
def _silu(x):
    return torch.nn.functional.silu(x)
def _sigmoid(x):
    return torch.sigmoid(x)
def _layernorm(x, axis=-1, eps=1e-5):
    m = x.mean(dim=axis, keepdim=True)
    v = x.var(dim=axis, keepdim=True, unbiased=False)
    return (x - m) / torch.sqrt(v + eps)
def _scatter_add(tgt, idx, src, axis=0):
    return tgt.clone().index_add_(axis, idx, src)
def _segment_sum(src, seg, n):
    out = torch.zeros((n,) + src.shape[1:], dtype=src.dtype)
    return out.index_add_(0, seg, src)
def _pad(x, pw):
    flat = tuple(v for pair in reversed(pw) for v in pair)
    return torch.nn.functional.pad(x, flat)

kernel_name = 'concat_heads__mha_block_cached__gqa_block_cached__decode'

def setup_inputs():

    _w = (lambda a: (lambda t: t.to(torch.bfloat16) if t.is_floating_point() else t)(torch.as_tensor(a)))
    def _A_setup():
        B, Sq, D = 1, 1, 512
        H, Sk, Dh = 32, 8192, 128
        return {
            "x": _w((lambda *s: torch.randn(*s, dtype=torch.bfloat16) * 0.8)(B, Sq, D)),
            "k_cache": _w((lambda *s: torch.randn(*s, dtype=torch.bfloat16) * 0.8)(B, H, Sk, Dh)),
            "v_cache": _w((lambda *s: torch.randn(*s, dtype=torch.bfloat16) * 0.05)(B, H, Sk, Dh)),
            "wq": _w((lambda *s: torch.randn(*s, dtype=torch.bfloat16) * 0.8)(D, H * Dh) * (D ** -0.5)),
            "wo": _w((lambda *s: torch.randn(*s, dtype=torch.bfloat16) * 0.05)(H * Dh, D) * ((H * Dh) ** -0.5)),
        }
    _A_in = _A_setup()

    def _B_setup():
        B, Sq, D = 1, 1, 512
        Hq, Hkv, Sk, Dh = 32, 32, 8192, 128
        assert Hq % Hkv == 0, (Hq, Hkv)
        return {
            "x": _w((lambda *s: torch.randn(*s, dtype=torch.bfloat16) * 0.8)(B, Sq, D)),
            "k_cache": _w((lambda *s: torch.randn(*s, dtype=torch.bfloat16) * 0.8)(B, Hkv, Sk, Dh)),
            "v_cache": _w((lambda *s: torch.randn(*s, dtype=torch.bfloat16) * 0.05)(B, Hkv, Sk, Dh)),
            "wq": _w((lambda *s: torch.randn(*s, dtype=torch.bfloat16) * 0.8)(D, Hq * Dh) * (D ** -0.5)),
            "wo": _w((lambda *s: torch.randn(*s, dtype=torch.bfloat16) * 0.05)(Hq * Dh, D) * ((Hq * Dh) ** -0.5)),
        }
    _B_in = _B_setup()

    return {
        "A_x": _A_in["x"],
        "A_k_cache": _A_in["k_cache"],
        "A_v_cache": _A_in["v_cache"],
        "A_wq": _A_in["wq"],
        "A_wo": _A_in["wo"],
        "B_x": _B_in["x"],
        "B_k_cache": _B_in["k_cache"],
        "B_v_cache": _B_in["v_cache"],
        "B_wq": _B_in["wq"],
        "B_wo": _B_in["wo"],
    }

def reference(A_x, A_k_cache, A_v_cache, A_wq, A_wo, B_x, B_k_cache, B_v_cache, B_wq, B_wo):
    def _A_ref(x, k_cache, v_cache, wq, wo):
        B, Sq, D = x.shape
        H, Dh = 32, 128
        q = (lambda x, *d: x.permute(*d))((x @ wq).reshape(B, Sq, H, Dh), 0, 2, 1, 3)
        scores = torch.einsum("bhqd,bhkd->bhqk", q, k_cache) * (Dh ** -0.5)
        p = _softmax(scores, axis=-1)
        o = torch.einsum("bhqk,bhkd->bhqd", p, v_cache)
        return (lambda x, *d: x.permute(*d))(o, 0, 2, 1, 3).reshape(B, Sq, H * Dh) @ wo

    def _B_ref(x, k_cache, v_cache, wq, wo):
        B, Sq, D = x.shape
        Hq, Dh = 32, 128
        Hkv = k_cache.shape[1]
        rep = Hq // Hkv
        q = (lambda x, *d: x.permute(*d))((x @ wq).reshape(B, Sq, Hq, Dh), 0, 2, 1, 3)
        k = (lambda x, n, axis: torch.repeat_interleave(x, n, dim=axis))(k_cache, rep, axis=1)
        v = (lambda x, n, axis: torch.repeat_interleave(x, n, dim=axis))(v_cache, rep, axis=1)
        scores = torch.einsum("bhqd,bhkd->bhqk", q, k) * (Dh ** -0.5)
        p = _softmax(scores, axis=-1)
        o = torch.einsum("bhqk,bhkd->bhqd", p, v)
        return (lambda x, *d: x.permute(*d))(o, 0, 2, 1, 3).reshape(B, Sq, Hq * Dh) @ wo

    a = _A_ref(A_x, A_k_cache, A_v_cache, A_wq, A_wo)
    b = _B_ref(B_x, B_k_cache, B_v_cache, B_wq, B_wo)
    return torch.concatenate([a, b], axis=-1)
```

```python
import re, struct

def f2u(x):
    return struct.unpack('<I', struct.pack('<f', x))[0]

def regs_of(op):
    op = op.strip()
    op = op.lstrip('-')
    m = re.fullmatch(r'abs\((.*)\)', op)
    if m: op = m.group(1)
    m = re.fullmatch(r'([vs])(\d+)', op)
    if m: return [(m.group(1), int(m.group(2)))]
    m = re.fullmatch(r'([vs])\[(\d+):(\d+)\]', op)
    if m: return [(m.group(1), i) for i in range(int(m.group(2)), int(m.group(3))+1)]
    if op == 'vcc': return [('s', 106), ('s', 107)]
    if op == 'exec': return [('s', 126), ('s', 127)]
    return []

TRANS = ('v_exp_f32', 'v_rcp_f32', 'v_log_f32', 'v_rsq_f32', 'v_sqrt_f32')

class Asm:
    def __init__(self):
        self.lines = []
        self.slot = 0
        self.lastw = {}
        self.store_data = {}
        self.vm = []
    def raw(self, s):
        self.lines.append(s)
    def comment(self, s):
        self.lines.append('    ; ' + s)
    def label(self, s):
        self.lines.append(s + ':')
    def nop(self, n):
        while n > 0:
            k = min(n, 16)
            self.lines.append('    s_nop %d' % (k-1))
            self.slot += k
            n -= k
    def _need(self, reg, states):
        if reg not in self.lastw: return 0
        w = self.lastw[reg][0]
        have = self.slot - w - 1
        return max(0, states - have)
    def I(self, opc, *ops, mods='', tag=None):
        ops = [str(o) for o in ops]
        base = opc
        is_valu = opc.startswith('v_')
        is_dpp = 'row_' in mods or opc.endswith('_dpp')
        is_store = opc.startswith('buffer_store') or opc.startswith('global_store')
        is_vload = opc.startswith('buffer_load') or opc.startswith('global_load')
        is_dsw = opc.startswith('ds_write')
        is_dsr = opc.startswith('ds_read')
        is_salu = opc.startswith('s_')
        if is_store or is_dsw:
            wr = []; rd = sum((regs_of(o) for o in ops), [])
        elif opc.startswith('v_permlane'):
            wr = regs_of(ops[0]) + regs_of(ops[1]); rd = list(wr)
        elif opc.startswith('v_cmp'):
            wr = regs_of(ops[0]); rd = sum((regs_of(o) for o in ops[1:]), [])
        elif opc in ('s_waitcnt', 's_barrier', 's_endpgm', 's_branch') or opc.startswith('s_cbranch'):
            wr = []; rd = []
        elif opc.startswith('s_cmp'):
            wr = []; rd = sum((regs_of(o) for o in ops), [])
        else:
            wr = regs_of(ops[0]); rd = sum((regs_of(o) for o in ops[1:]), [])
            if opc.startswith('v_fmac') or opc.startswith('v_dot2c'):
                rd += wr
        need = 0
        for r in rd + wr:
            if r not in self.lastw: continue
            ws, kind, wop = self.lastw[r]
            isread = r in rd
            if kind == 'dot':
                if wop == opc and is_valu and len(ops) == 4 and r in regs_of(ops[3]) and r not in regs_of(ops[1]) + regs_of(ops[2]):
                    pass
                else:
                    need = max(need, self._need(r, 3))
            if kind in ('valu', 'dot', 'trans') and r[0] == 'v' and isread:
                if is_dpp: need = max(need, self._need(r, 2))
                if opc.startswith('v_permlane'): need = max(need, self._need(r, 2))
                if opc.startswith('v_readfirstlane') or opc.startswith('v_readlane'): need = max(need, self._need(r, 1))
                if kind == 'trans' and is_valu and opc not in TRANS: need = max(need, self._need(r, 1))
                if kind == 'trans' and not is_valu: need = max(need, self._need(r, 1))
            if kind in ('valu',) and r[0] == 's' and isread:
                if is_valu: need = max(need, self._need(r, 2))
                if is_store or is_vload: need = max(need, self._need(r, 5))
                if is_salu: need = max(need, self._need(r, 2))
        if is_valu or is_vload or is_dsr:
            for r in wr:
                if r in self.store_data:
                    have = self.slot - self.store_data[r] - 1
                    need = max(need, 2 - have)
        if need > 0: self.nop(need)
        txt = '    ' + opc + (' ' + ', '.join(ops) if ops else '') + ((' ' + mods) if mods else '')
        self.lines.append(txt)
        kind = 'other'
        if is_valu:
            kind = 'valu'
            if opc.startswith('v_dot'): kind = 'dot'
            if opc in TRANS: kind = 'trans'
        for r in wr:
            self.lastw[r] = (self.slot, kind, opc)
        if is_store and ('x4' in opc or 'x3' in opc):
            for r in regs_of(ops[0]): self.store_data[r] = self.slot
        if is_vload or is_store:
            self.vm.append(tag)
        self.slot += 1
    def wait_vm(self, tag):
        if tag not in self.vm: return
        idx = max(i for i, t in enumerate(self.vm) if t == tag)
        n = len(self.vm) - 1 - idx
        assert n <= 63, n
        self.I('s_waitcnt', 'vmcnt(%d)' % n)
        self.vm = self.vm[idx+1:]
    def wait_vm_all(self):
        self.I('s_waitcnt', 'vmcnt(0)')
        self.vm = []
    def wait_lgkm(self):
        self.I('s_waitcnt', 'lgkmcnt(0)')
    def text(self):
        return '\n'.join(self.lines) + '\n'

def v(n): return 'v%d' % n
def vr(n, k): return 'v[%d:%d]' % (n, n+k-1)
def s(n): return 's%d' % n
def sr(n, k): return 's[%d:%d]' % (n, n+k-1)
```

```python
import sys, math
sys.path.insert(0, 'gen')
from asmlib import *

NAME = 'concat_heads__mha_block_cached__gqa_block_cached__decode'
HEADER = open('cdna_kernels/%s.s.ref' % NAME).read().split('; @launch')[0]

def gen(pattern='P2', kvmod='nt', wmod=''):
    A = Asm()
    I = A.I
    QS, OP, ML, YP = 8192, 12288, 20480, 21504
    LDS1 = YP + 32768
    K1 = NAME + '_kernel'
    K2 = 'concat_heads_combine_kernel'
    A.raw(HEADER.rstrip('\n'))
    A.raw('; @launch kernel=%s grid=(256,1,1) block=(1024,1,1) lds=%d' % (K1, LDS1))
    A.raw('; @launch kernel=%s grid=(32,1,1) block=(256,1,1) lds=4096' % K2)
    A.raw('.amdgcn_target "amdgcn-amd-amdhsa--gfx950"')
    A.raw('.text')
    A.raw('.globl %s' % K1)
    A.raw('.p2align 8')
    A.raw('.type %s,@function' % K1)
    A.label(K1)
    I('s_cmp_ge_u32', 's2', 256)
    I('s_cbranch_scc1', 'L_k1_end')
    I('s_and_b32', 's3', 's2', 7)
    I('s_lshr_b32', 's4', 's2', 3)
    I('s_and_b32', 's5', 's4', 3)
    I('s_lshr_b32', 's4', 's2', 5)
    I('s_lshl_b32', 's4', 's4', 3)
    I('s_add_u32', 's4', 's4', 's3')
    I('s_lshr_b32', 's6', 's4', 5)
    I('s_and_b32', 's7', 's4', 31)
    I('s_mul_i32', 's8', 's6', 40)
    I('s_load_dwordx4', 's[12:15]', 's[0:1]', 's8')
    I('s_load_dwordx4', 's[16:19]', 's[0:1]', 's8', mods='offset:16')
    I('s_load_dwordx2', 's[20:21]', 's[0:1]', 's8', mods='offset:32')
    I('s_load_dwordx2', 's[22:23]', 's[0:1]', 96)
    I('v_and_b32', 'v19', '0x3f0', 'v0')
    I('v_lshrrev_b32', 'v18', 4, 'v0')
    I('v_lshlrev_b32', 'v18', 16, 'v18')
    I('v_and_b32', 'v3', 15, 'v0')
    I('v_lshl_add_u32', 'v18', 'v3', 4, 'v18')
    I('v_and_b32', 'v17', 63, 'v0')
    I('v_lshlrev_b32', 'v17', 4, 'v17')
    I('v_lshrrev_b32', 'v16', 6, 'v0')
    if pattern == 'P1':
        I('v_lshl_add_u32', 'v1', 'v16', 15, 'v17')
        CSTR = 4096
    else:
        I('v_lshl_add_u32', 'v1', 'v16', 12, 'v17')
        CSTR = 65536
    I('v_lshl_add_u32', 'v2', 'v16', 13, 'v17')
    I('s_lshl_b32', 's48', 's7', 21)
    I('s_lshl_b32', 's49', 's5', 19)
    I('s_add_u32', 's50', 's48', 's49')
    for c in range(1, 8):
        I('s_add_u32', s(50+c), s(49+c), CSTR)
    I('s_lshl_b32', 's60', 's7', 8)
    for j in range(1, 8):
        I('s_add_u32', s(60+j), s(59+j), 8192)
    I('s_lshl_b32', 's68', 's7', 17)
    I('s_add_u32', 's69', 's68', 4096)
    I('s_mov_b32', 's70', '0x%08x' % f2u(math.log2(math.e) / math.sqrt(128.0)))
    I('s_lshl_b32', 's71', 's4', 2)
    I('s_add_u32', 's71', 's71', 's5')
    I('s_lshl_b32', 's72', 's71', 11)
    I('s_lshl_b32', 's73', 's71', 3)
    I('s_add_u32', 's73', 's73', 524288)
    A.wait_lgkm()
    def srd(d, lo, nbytes):
        I('s_mov_b32', s(d), s(lo))
        I('s_mov_b32', s(d+1), s(lo+1))
        I('s_mov_b32', s(d+2), nbytes)
        I('s_mov_b32', s(d+3), '0x00020000')
    srd(24, 12, 1024)
    srd(36, 18, 4194304)
    srd(28, 14, 67108864)
    srd(32, 16, 67108864)
    srd(40, 20, 4194304)
    srd(44, 22, 526336)
    B = lambda i: 32 + 4*i
    I('buffer_load_dwordx4', vr(4, 4), 'v19', 's[24:27]', 0, mods='offen', tag='wq')
    for j in range(8):
        I('buffer_load_dwordx4', vr(B(16+j), 4), 'v18', 's[36:39]', s(60+j), mods=('offen ' + wmod).strip(), tag='wq')
    def issueK(c):
        G = c % 3
        for j in range(4):
            I('buffer_load_dwordx4', vr(B(8*G+j), 4), 'v1', 's[28:31]', s(50+c), mods=('offen offset:%d ' % (1024*j) + kvmod).strip(), tag='K%d' % c)
    def issueV(c):
        G = c % 3
        for j in range(4):
            I('buffer_load_dwordx4', vr(B(8*G+4+j), 4), 'v1', 's[32:35]', s(50+c), mods=('offen offset:%d ' % (1024*j) + kvmod).strip(), tag='V%d' % c)
    def issueWO(half):
        for j in range(4):
            I('buffer_load_dwordx4', vr(B(16+4*half+j), 4), 'v2', 's[40:43]', s(68+half), mods=('offen offset:%d ' % (1024*j) + wmod).strip(), tag='WO')
    issueK(0); issueV(0); issueK(1); issueV(1)
    A.wait_vm('wq')
    for j in range(8):
        xd = v(4 + j//2)
        if j % 2 == 0:
            I('v_and_b32', v(16+j), '0xffff', xd)
            I('v_lshlrev_b32', v(24+j), 16, xd)
        else:
            I('v_lshrrev_b32', v(16+j), 16, xd)
            I('v_and_b32', v(24+j), '0xffff0000', xd)
    for j in range(8):
        for d in range(4):
            src = v(B(16+j)+d)
            I('v_dot2_f32_bf16', v(8+2*d), v(16+j), src, (0 if j == 0 else v(8+2*d)))
            I('v_dot2_f32_bf16', v(9+2*d), v(24+j), src, (0 if j == 0 else v(9+2*d)))
    issueK(2); issueV(2)
    def dist_reduce(a):
        for i in range(4): I('v_permlane32_swap_b32', v(a+i), v(a+i+4))
        for i in range(4): I('v_add_f32', v(a+i), v(a+i), v(a+i+4))
        for i in range(2): I('v_permlane16_swap_b32', v(a+i), v(a+i+2))
        for i in range(2): I('v_add_f32', v(a+i), v(a+i), v(a+i+2))
    dist_reduce(8)
    I('v_lshrrev_b32', 'v16', 6, 'v0')
    I('v_lshlrev_b32', 'v16', 9, 'v16')
    I('v_lshl_add_u32', 'v16', 'v3', 5, 'v16')
    I('v_bfe_u32', 'v17', 'v0', 4, 2)
    I('v_lshl_add_u32', 'v16', 'v17', 3, 'v16')
    I('ds_write_b64', 'v16', 'v[8:9]')
    I('v_lshlrev_b32', 'v18', 11, 'v17')
    I('v_lshl_add_u32', 'v18', 'v3', 5, 'v18')
    A.wait_lgkm()
    I('s_barrier')
    I('ds_read_b128', 'v[8:11]', 'v18', mods='offset:0')
    I('ds_read_b128', 'v[12:15]', 'v18', mods='offset:16')
    I('ds_read_b128', 'v[20:23]', 'v18', mods='offset:512')
    I('ds_read_b128', 'v[24:27]', 'v18', mods='offset:528')
    A.wait_lgkm()
    for i in range(8): I('v_add_f32', v(8+i), v(8+i), v(20+i))
    I('ds_read_b128', 'v[20:23]', 'v18', mods='offset:1024')
    I('ds_read_b128', 'v[24:27]', 'v18', mods='offset:1040')
    A.wait_lgkm()
    for i in range(8): I('v_add_f32', v(8+i), v(8+i), v(20+i))
    I('ds_read_b128', 'v[20:23]', 'v18', mods='offset:1536')
    I('ds_read_b128', 'v[24:27]', 'v18', mods='offset:1552')
    A.wait_lgkm()
    for i in range(8): I('v_add_f32', v(8+i), v(8+i), v(20+i))
    dist_reduce(8)
    I('v_cvt_pk_bf16_f32', 'v8', 'v8', 'v9')
    I('v_lshrrev_b32', 'v18', 6, 'v0')
    I('v_lshlrev_b32', 'v18', 8, 'v18')
    I('v_lshl_add_u32', 'v18', 'v3', 4, 'v18')
    I('v_lshl_add_u32', 'v19', 'v17', 2, 'v18')
    I('ds_write_b32', 'v19', 'v8', mods='offset:%d' % QS)
    A.wait_lgkm()
    I('ds_read_b128', 'v[4:7]', 'v18', mods='offset:%d' % QS)
    for i in range(8): I('v_mov_b32', v(8+i), 0)
    A.wait_lgkm()
    M, MC, L, AL = 16, 17, 18, 19
    S, PLO, PHI = 20, 24, 28
    for c in range(8):
        G = c % 3
        A.comment('chunk %d' % c)
        A.wait_vm('K%d' % c)
        for d in range(4):
            for j in range(4):
                I('v_dot2_f32_bf16', v(S+j), v(4+d), v(B(8*G+j)+d), (0 if d == 0 else v(S+j)))
        if c + 3 < 8: issueK(c+3)
        elif c == 5: issueWO(0)
        for step in (8, 4, 2, 1):
            for j in range(4):
                I('v_add_f32_dpp', v(S+j), v(S+j), v(S+j), mods='row_ror:%d row_mask:0xf bank_mask:0xf' % step)
        if c == 0:
            I('v_max_f32', v(M), v(S+0), v(S+1))
            I('v_max3_f32', v(M), v(S+2), v(S+3), v(M))
            I('v_mul_f32', v(MC), 's70', v(M))
        else:
            I('v_max3_f32', v(M), v(S+0), v(S+1), v(M))
            I('v_max3_f32', v(M), v(S+2), v(S+3), v(M))
            I('v_mul_f32', v(PLO), 's70', v(M))
            I('v_sub_f32', v(AL), v(MC), v(PLO))
            I('v_mov_b32', v(MC), v(PLO))
            I('v_exp_f32', v(AL), v(AL))
        for j in range(4):
            I('v_fma_f32', v(S+j), v(S+j), 's70', '-' + v(MC))
        for j in range(4):
            I('v_exp_f32', v(S+j), v(S+j))
        if c == 0:
            I('v_add_f32', v(L), v(S+0), v(S+1))
        else:
            I('v_fma_f32', v(L), v(L), v(AL), v(S+0))
            for i in range(8): I('v_mul_f32', v(8+i), v(AL), v(8+i))
            I('v_add_f32', v(L), v(L), v(S+1))
        for j in range(4):
            I('v_cvt_pk_bf16_f32', v(PLO+j), v(S+j), 0)
            I('v_cvt_pk_bf16_f32', v(PHI+j), 0, v(S+j))
        I('v_add_f32', v(L), v(L), v(S+2))
        I('v_add_f32', v(L), v(L), v(S+3))
        A.wait_vm('V%d' % c)
        for j in range(4):
            for d in range(4):
                src = v(B(8*G+4+j)+d)
                I('v_dot2_f32_bf16', v(8+2*d), v(PLO+j), src, v(8+2*d))
                I('v_dot2_f32_bf16', v(9+2*d), v(PHI+j), src, v(9+2*d))
        if c + 3 < 8: issueV(c+3)
        elif c == 5: issueWO(1)
    T = 20
    def allred4(x, t, op):
        I('v_mov_b32', v(t), v(x))
        I('v_permlane32_swap_b32', v(x), v(t))
        I(op, v(x), v(x), v(t))
        I('v_mov_b32', v(t), v(x))
        I('v_permlane16_swap_b32', v(x), v(t))
        I(op, v(x), v(x), v(t))
    I('v_mov_b32', 'v22', v(MC))
    allred4(22, 23, 'v_max_f32')
    I('v_sub_f32', v(AL), v(MC), 'v22')
    I('v_exp_f32', v(AL), v(AL))
    for i in range(8): I('v_mul_f32', v(8+i), v(AL), v(8+i))
    I('v_mul_f32', 'v23', v(AL), v(L))
    dist_reduce(8)
    allred4(23, 24, 'v_add_f32')
    I('v_lshrrev_b32', 'v25', 6, 'v0')
    I('v_lshlrev_b32', 'v26', 9, 'v25')
    I('v_lshl_add_u32', 'v26', 'v3', 5, 'v26')
    I('v_bfe_u32', 'v27', 'v0', 4, 2)
    I('v_lshl_add_u32', 'v26', 'v27', 3, 'v26')
    I('ds_write_b64', 'v26', 'v[8:9]', mods='offset:%d' % OP)
    I('v_lshlrev_b32', 'v26', 3, 'v25')
    I('ds_write_b64', 'v26', 'v[22:23]', mods='offset:%d' % ML)
    I('v_lshlrev_b32', 'v26', 3, 'v3')
    I('v_lshlrev_b32', 'v27', 9, 'v3')
    I('v_lshl_add_u32', 'v27', 'v25', 5, 'v27')
    A.wait_lgkm()
    I('s_barrier')
    I('ds_read_b64', 'v[22:23]', 'v26', mods='offset:%d' % ML)
    I('ds_read_b128', 'v[8:11]', 'v27', mods='offset:%d' % OP)
    I('ds_read_b128', 'v[12:15]', 'v27', mods='offset:%d' % (OP+16))
    A.wait_lgkm()
    I('v_mov_b32', 'v16', 'v22')
    for step in (8, 4, 2, 1):
        I('v_max_f32_dpp', 'v16', 'v16', 'v16', mods='row_ror:%d row_mask:0xf bank_mask:0xf' % step)
    I('v_sub_f32', 'v19', 'v22', 'v16')
    I('v_exp_f32', 'v19', 'v19')
    I('v_mul_f32', 'v17', 'v19', 'v23')
    for i in range(8): I('v_mul_f32', v(8+i), 'v19', v(8+i))
    for step in (8, 4, 2, 1):
        I('v_add_f32_dpp', 'v17', 'v17', 'v17', mods='row_ror:%d row_mask:0xf bank_mask:0xf' % step)
        for i in range(8):
            I('v_add_f32_dpp', v(8+i), v(8+i), v(8+i), mods='row_ror:%d row_mask:0xf bank_mask:0xf' % step)
    OLO, OHI, Y = 32, 40, 48
    for i in range(8):
        I('v_cvt_pk_bf16_f32', v(OLO+i), v(8+i), 0)
        I('v_cvt_pk_bf16_f32', v(OHI+i), 0, v(8+i))
    A.wait_vm('WO')
    for j in range(8):
        for d in range(4):
            src = v(B(16+j)+d)
            I('v_dot2_f32_bf16', v(Y+2*d), v(OLO+j), src, (0 if j == 0 else v(Y+2*d)))
            I('v_dot2_f32_bf16', v(Y+2*d+1), v(OHI+j), src, (0 if j == 0 else v(Y+2*d+1)))
    I('v_and_b32', 'v26', 63, 'v0')
    I('v_lshlrev_b32', 'v26', 4, 'v26')
    I('v_lshl_add_u32', 'v26', 'v25', 11, 'v26')
    I('ds_write_b128', 'v26', vr(Y, 4), mods='offset:%d' % YP)
    I('ds_write_b128', 'v26', vr(Y+4, 4), mods='offset:%d' % (YP+1024))
    I('v_lshlrev_b32', 'v27', 2, 'v0')
    I('v_bfe_u32', 'v28', 'v0', 2, 6)
    I('v_lshlrev_b32', 'v28', 5, 'v28')
    I('v_lshrrev_b32', 'v29', 8, 'v0')
    I('v_lshl_add_u32', 'v28', 'v29', 4, 'v28')
    I('v_and_b32', 'v29', 3, 'v0')
    I('v_lshl_add_u32', 'v28', 'v29', 2, 'v28')
    A.wait_lgkm()
    I('s_barrier')
    I('v_cmp_gt_u32', 'vcc', 512, 'v0')
    I('s_and_saveexec_b64', 's[80:81]', 'vcc')
    I('s_cbranch_execz', 'L_k1_ml')
    for w in range(16):
        I('ds_read_b32', v(64+w), 'v27', mods='offset:%d' % (YP + w*2048))
    A.wait_lgkm()
    for w in range(8): I('v_add_f32', v(64+w), v(64+w), v(72+w))
    for w in range(4): I('v_add_f32', v(64+w), v(64+w), v(68+w))
    for w in range(2): I('v_add_f32', v(64+w), v(64+w), v(66+w))
    I('v_add_f32', 'v64', 'v64', 'v65')
    I('buffer_store_dword', 'v64', 'v28', 's[44:47]', 's72', mods='offen')
    A.label('L_k1_ml')
    I('s_mov_b64', 'exec', 's[80:81]')
    I('v_cmp_eq_u32', 'vcc', 512, 'v0')
    I('s_and_saveexec_b64', 's[80:81]', 'vcc')
    I('s_cbranch_execz', 'L_k1_end')
    I('v_mov_b32', 'v28', 0)
    I('buffer_store_dwordx2', 'v[16:17]', 'v28', 's[44:47]', 's73', mods='offen')
    A.label('L_k1_end')
    I('s_endpgm')

    A2 = Asm(); I = A2.I
    A2.raw('.globl %s' % K2)
    A2.raw('.p2align 8')
    A2.raw('.type %s,@function' % K2)
    A2.label(K2)
    I('s_cmp_ge_u32', 's2', 32)
    I('s_cbranch_scc1', 'L_k2_end')
    I('s_load_dwordx2', 's[4:5]', 's[0:1]', 80)
    I('s_load_dwordx2', 's[6:7]', 's[0:1]', 96)
    I('s_lshr_b32', 's3', 's2', 4)
    I('s_and_b32', 's16', 's2', 15)
    I('s_lshl_b32', 's17', 's3', 18)
    I('s_lshl_b32', 's18', 's16', 7)
    I('s_add_u32', 's17', 's17', 's18')
    I('s_add_u32', 's18', 's17', 4096)
    I('s_lshl_b32', 's19', 's3', 10)
    I('s_add_u32', 's19', 's19', 524288)
    I('s_lshl_b32', 's20', 's3', 10)
    I('s_lshl_b32', 's21', 's16', 6)
    I('s_add_u32', 's20', 's20', 's21')
    I('v_lshrrev_b32', 'v1', 3, 'v0')
    I('v_and_b32', 'v2', 7, 'v0')
    I('v_lshlrev_b32', 'v2', 4, 'v2')
    I('v_lshl_add_u32', 'v2', 'v1', 13, 'v2')
    I('v_lshlrev_b32', 'v3', 5, 'v1')
    A2.wait_lgkm()
    I('s_mov_b32', 's8', 's6'); I('s_mov_b32', 's9', 's7'); I('s_mov_b32', 's10', 526336); I('s_mov_b32', 's11', '0x00020000')
    I('s_mov_b32', 's12', 's4'); I('s_mov_b32', 's13', 's5'); I('s_mov_b32', 's14', 2048); I('s_mov_b32', 's15', '0x00020000')
    I('buffer_load_dwordx4', 'v[4:7]', 'v3', 's[8:11]', 's19', mods='offen', tag='ml')
    I('buffer_load_dwordx4', 'v[8:11]', 'v3', 's[8:11]', 's19', mods='offen offset:16', tag='ml')
    I('buffer_load_dwordx4', 'v[12:15]', 'v2', 's[8:11]', 's17', mods='offen', tag='y')
    I('buffer_load_dwordx4', 'v[16:19]', 'v2', 's[8:11]', 's17', mods='offen offset:2048', tag='y')
    I('buffer_load_dwordx4', 'v[20:23]', 'v2', 's[8:11]', 's18', mods='offen', tag='y')
    I('buffer_load_dwordx4', 'v[24:27]', 'v2', 's[8:11]', 's18', mods='offen offset:2048', tag='y')
    A2.wait_vm('ml')
    I('v_max_f32', 'v28', 'v4', 'v6')
    I('v_max3_f32', 'v28', 'v8', 'v10', 'v28')
    for k, r in enumerate((4, 6, 8, 10)):
        I('v_sub_f32', v(r), v(r), 'v28')
    for k, r in enumerate((4, 6, 8, 10)):
        I('v_exp_f32', v(r), v(r))
    I('v_mul_f32', 'v29', 'v4', 'v5')
    I('v_fma_f32', 'v29', 'v6', 'v7', 'v29')
    I('v_fma_f32', 'v29', 'v8', 'v9', 'v29')
    I('v_fma_f32', 'v29', 'v10', 'v11', 'v29')
    I('v_rcp_f32', 'v29', 'v29')
    for r in (4, 6, 8, 10):
        I('v_mul_f32', v(r), v(r), 'v29')
    A2.wait_vm('y')
    for k in range(4):
        I('v_mul_f32', v(12+k), 'v4', v(12+k))
    for k in range(4):
        I('v_fma_f32', v(12+k), 'v6', v(16+k), v(12+k))
    for k in range(4):
        I('v_fma_f32', v(12+k), 'v8', v(20+k), v(12+k))
    for k in range(4):
        I('v_fma_f32', v(12+k), 'v10', v(24+k), v(12+k))
    I('v_lshlrev_b32', 'v1', 4, 'v0')
    I('ds_write_b128', 'v1', 'v[12:15]')
    I('v_lshlrev_b32', 'v2', 2, 'v0')
    I('v_lshlrev_b32', 'v3', 1, 'v0')
    A2.wait_lgkm()
    I('s_barrier')
    I('v_cmp_gt_u32', 'vcc', 32, 'v0')
    I('s_and_saveexec_b64', 's[22:23]', 'vcc')
    I('s_cbranch_execz', 'L_k2_end')
    for h in range(32):
        I('ds_read_b32', v(4+h), 'v2', mods='offset:%d' % (h*128))
    A2.wait_lgkm()
    n = 32
    while n > 1:
        n //= 2
        for i in range(n): I('v_add_f32', v(4+i), v(4+i), v(4+n+i))
    I('v_cvt_pk_bf16_f32', 'v4', 'v4', 0)
    I('buffer_store_short', 'v4', 'v3', 's[12:15]', 's20', mods='offen')
    A2.label('L_k2_end')
    I('s_endpgm')

    out = A.text() + A2.text()
    out += '''.section .rodata,"a"
.p2align 6
.amdhsa_kernel %s
  .amdhsa_next_free_vgpr 128
  .amdhsa_next_free_sgpr 96
  .amdhsa_accum_offset 128
  .amdhsa_group_segment_fixed_size 0
  .amdhsa_kernarg_size 104
  .amdhsa_user_sgpr_count 2
  .amdhsa_user_sgpr_kernarg_segment_ptr 1
  .amdhsa_system_sgpr_workgroup_id_x 1
.end_amdhsa_kernel
.p2align 6
.amdhsa_kernel %s
  .amdhsa_next_free_vgpr 40
  .amdhsa_next_free_sgpr 32
  .amdhsa_accum_offset 40
  .amdhsa_group_segment_fixed_size 0
  .amdhsa_kernarg_size 104
  .amdhsa_user_sgpr_count 2
  .amdhsa_user_sgpr_kernarg_segment_ptr 1
  .amdhsa_system_sgpr_workgroup_id_x 1
.end_amdhsa_kernel
''' % (K1, K2)
    return out

if __name__ == '__main__':
    import argparse
    ap = argparse.ArgumentParser()
    ap.add_argument('--pattern', default='P2')
    ap.add_argument('--kvmod', default='nt')
    ap.add_argument('--wmod', default='')
    ap.add_argument('-o', default='cdna_kernels/%s.s' % NAME)
    a = ap.parse_args()
    open(a.o, 'w').write(gen(a.pattern, a.kvmod, a.wmod))
```

```python
import sys, math
sys.path.insert(0, 'gen')
from asmlib import *

NAME = 'concat_heads__mha_block_cached__gqa_block_cached__decode'
HEADER = open('cdna_kernels/%s.s.ref' % NAME).read().split('; @launch')[0]

def gen(pattern='P2', kvmod='nt', wmod='', nocompute=False, noq=False, notail=False):
    A = Asm()
    I = A.I
    QS, OP, ML, YP = 8192, 12288, 20480, 21504
    LDS1 = YP + 32768
    K1 = NAME + '_kernel'
    K2 = 'concat_heads_combine_kernel'
    A.raw(HEADER.rstrip('\n'))
    A.raw('; @launch kernel=%s grid=(256,1,1) block=(1024,1,1) lds=%d' % (K1, LDS1))
    A.raw('; @launch kernel=%s grid=(32,1,1) block=(256,1,1) lds=4096' % K2)
    A.raw('.amdgcn_target "amdgcn-amd-amdhsa--gfx950"')
    A.raw('.text')
    A.raw('.globl %s' % K1)
    A.raw('.p2align 8')
    A.raw('.type %s,@function' % K1)
    A.label(K1)
    I('s_cmp_ge_u32', 's2', 256)
    I('s_cbranch_scc1', 'L_k1_end')
    I('s_and_b32', 's3', 's2', 7)
    I('s_lshr_b32', 's4', 's2', 3)
    I('s_and_b32', 's5', 's4', 3)
    I('s_lshr_b32', 's4', 's2', 5)
    I('s_lshl_b32', 's4', 's4', 3)
    I('s_add_u32', 's4', 's4', 's3')
    I('s_lshr_b32', 's6', 's4', 5)
    I('s_and_b32', 's7', 's4', 31)
    I('s_mul_i32', 's8', 's6', 40)
    I('s_load_dwordx4', 's[12:15]', 's[0:1]', 's8')
    I('s_load_dwordx4', 's[16:19]', 's[0:1]', 's8', mods='offset:16')
    I('s_load_dwordx2', 's[20:21]', 's[0:1]', 's8', mods='offset:32')
    I('s_load_dwordx2', 's[22:23]', 's[0:1]', 96)
    I('v_and_b32', 'v19', '0x3f0', 'v0')
    I('v_lshrrev_b32', 'v18', 4, 'v0')
    I('v_lshlrev_b32', 'v18', 16, 'v18')
    I('v_and_b32', 'v3', 15, 'v0')
    I('v_lshl_add_u32', 'v18', 'v3', 4, 'v18')
    I('v_and_b32', 'v17', 63, 'v0')
    I('v_lshlrev_b32', 'v17', 4, 'v17')
    I('v_lshrrev_b32', 'v16', 6, 'v0')
    if pattern == 'P1':
        I('v_lshl_add_u32', 'v1', 'v16', 15, 'v17')
        CSTR = 4096
    else:
        I('v_lshl_add_u32', 'v1', 'v16', 12, 'v17')
        CSTR = 65536
    I('v_lshl_add_u32', 'v2', 'v16', 13, 'v17')
    I('s_lshl_b32', 's48', 's7', 21)
    I('s_lshl_b32', 's49', 's5', 19)
    I('s_add_u32', 's50', 's48', 's49')
    for c in range(1, 8):
        I('s_add_u32', s(50+c), s(49+c), CSTR)
    I('s_lshl_b32', 's60', 's7', 8)
    for j in range(1, 8):
        I('s_add_u32', s(60+j), s(59+j), 8192)
    I('s_lshl_b32', 's68', 's7', 17)
    I('s_add_u32', 's69', 's68', 4096)
    I('s_mov_b32', 's70', '0x%08x' % f2u(math.log2(math.e) / math.sqrt(128.0)))
    I('s_lshl_b32', 's71', 's4', 2)
    I('s_add_u32', 's71', 's71', 's5')
    I('s_lshl_b32', 's72', 's71', 11)
    I('s_lshl_b32', 's73', 's71', 3)
    I('s_add_u32', 's73', 's73', 524288)
    A.wait_lgkm()
    def srd(d, lo, nbytes):
        I('s_mov_b32', s(d), s(lo))
        I('s_mov_b32', s(d+1), s(lo+1))
        I('s_mov_b32', s(d+2), nbytes)
        I('s_mov_b32', s(d+3), '0x00020000')
    srd(24, 12, 1024)
    srd(36, 18, 4194304)
    srd(28, 14, 67108864)
    srd(32, 16, 67108864)
    srd(40, 20, 4194304)
    srd(44, 22, 526336)
    B = lambda i: 32 + 4*i
    if not noq:
      I('buffer_load_dwordx4', vr(4, 4), 'v19', 's[24:27]', 0, mods='offen', tag='wq')
      for j in range(8):
        I('buffer_load_dwordx4', vr(B(16+j), 4), 'v18', 's[36:39]', s(60+j), mods=('offen ' + wmod).strip(), tag='wq')
    def issueK(c):
        G = c % 3
        for j in range(4):
            I('buffer_load_dwordx4', vr(B(8*G+j), 4), 'v1', 's[28:31]', s(50+c), mods=('offen offset:%d ' % (1024*j) + kvmod).strip(), tag='K%d' % c)
    def issueV(c):
        G = c % 3
        for j in range(4):
            I('buffer_load_dwordx4', vr(B(8*G+4+j), 4), 'v1', 's[32:35]', s(50+c), mods=('offen offset:%d ' % (1024*j) + kvmod).strip(), tag='V%d' % c)
    def issueWO(half):
        for j in range(4):
            I('buffer_load_dwordx4', vr(B(16+4*half+j), 4), 'v2', 's[40:43]', s(68+half), mods=('offen offset:%d ' % (1024*j) + wmod).strip(), tag='WO')
    issueK(0); issueV(0); issueK(1); issueV(1)
    if noq:
        issueK(2); issueV(2)
        for i in range(4): I('v_mov_b32', v(4+i), '0x3f803f80')
        for i in range(8): I('v_mov_b32', v(8+i), 0)
        I('s_branch', 'L_main')
        A.vm.insert(0, 'wq')
    A.wait_vm('wq')
    for j in range(8):
        xd = v(4 + j//2)
        if j % 2 == 0:
            I('v_and_b32', v(16+j), '0xffff', xd)
            I('v_lshlrev_b32', v(24+j), 16, xd)
        else:
            I('v_lshrrev_b32', v(16+j), 16, xd)
            I('v_and_b32', v(24+j), '0xffff0000', xd)
    for j in range(8):
        for d in range(4):
            src = v(B(16+j)+d)
            I('v_dot2_f32_bf16', v(8+2*d), v(16+j), src, (0 if j == 0 else v(8+2*d)))
            I('v_dot2_f32_bf16', v(9+2*d), v(24+j), src, (0 if j == 0 else v(9+2*d)))
    if not noq: issueK(2); issueV(2)
    def dist_reduce(a):
        for i in range(4): I('v_permlane32_swap_b32', v(a+i), v(a+i+4))
        for i in range(4): I('v_add_f32', v(a+i), v(a+i), v(a+i+4))
        for i in range(2): I('v_permlane16_swap_b32', v(a+i), v(a+i+2))
        for i in range(2): I('v_add_f32', v(a+i), v(a+i), v(a+i+2))
    dist_reduce(8)
    I('v_lshrrev_b32', 'v16', 6, 'v0')
    I('v_lshlrev_b32', 'v16', 9, 'v16')
    I('v_lshl_add_u32', 'v16', 'v3', 5, 'v16')
    I('v_bfe_u32', 'v17', 'v0', 4, 2)
    I('v_lshl_add_u32', 'v16', 'v17', 3, 'v16')
    I('ds_write_b64', 'v16', 'v[8:9]')
    I('v_lshlrev_b32', 'v18', 11, 'v17')
    I('v_lshl_add_u32', 'v18', 'v3', 5, 'v18')
    A.wait_lgkm()
    I('s_barrier')
    I('ds_read_b128', 'v[8:11]', 'v18', mods='offset:0')
    I('ds_read_b128', 'v[12:15]', 'v18', mods='offset:16')
    I('ds_read_b128', 'v[20:23]', 'v18', mods='offset:512')
    I('ds_read_b128', 'v[24:27]', 'v18', mods='offset:528')
    A.wait_lgkm()
    for i in range(8): I('v_add_f32', v(8+i), v(8+i), v(20+i))
    I('ds_read_b128', 'v[20:23]', 'v18', mods='offset:1024')
    I('ds_read_b128', 'v[24:27]', 'v18', mods='offset:1040')
    A.wait_lgkm()
    for i in range(8): I('v_add_f32', v(8+i), v(8+i), v(20+i))
    I('ds_read_b128', 'v[20:23]', 'v18', mods='offset:1536')
    I('ds_read_b128', 'v[24:27]', 'v18', mods='offset:1552')
    A.wait_lgkm()
    for i in range(8): I('v_add_f32', v(8+i), v(8+i), v(20+i))
    dist_reduce(8)
    I('v_cvt_pk_bf16_f32', 'v8', 'v8', 'v9')
    I('v_lshrrev_b32', 'v18', 6, 'v0')
    I('v_lshlrev_b32', 'v18', 8, 'v18')
    I('v_lshl_add_u32', 'v18', 'v3', 4, 'v18')
    I('v_lshl_add_u32', 'v19', 'v17', 2, 'v18')
    I('ds_write_b32', 'v19', 'v8', mods='offset:%d' % QS)
    A.wait_lgkm()
    I('ds_read_b128', 'v[4:7]', 'v18', mods='offset:%d' % QS)
    for i in range(8): I('v_mov_b32', v(8+i), 0)
    A.wait_lgkm()
    A.label('L_main')
    M, MC, L, AL = 16, 17, 18, 19
    S, PLO, PHI = 20, 24, 28
    for c in range(8):
        G = c % 3
        A.comment('chunk %d' % c)
        A.wait_vm('K%d' % c)
        if nocompute:
            if c + 3 < 8: issueK(c+3)
            elif c == 5 and not notail: issueWO(0)
            A.wait_vm('V%d' % c)
            if c + 3 < 8: issueV(c+3)
            elif c == 5 and not notail: issueWO(1)
            continue
        for d in range(4):
            for j in range(4):
                I('v_dot2_f32_bf16', v(S+j), v(4+d), v(B(8*G+j)+d), (0 if d == 0 else v(S+j)))
        if c + 3 < 8: issueK(c+3)
        elif c == 5 and not notail: issueWO(0)
        for step in (8, 4, 2, 1):
            for j in range(4):
                I('v_add_f32_dpp', v(S+j), v(S+j), v(S+j), mods='row_ror:%d row_mask:0xf bank_mask:0xf' % step)
        if c == 0:
            I('v_max_f32', v(M), v(S+0), v(S+1))
            I('v_max3_f32', v(M), v(S+2), v(S+3), v(M))
            I('v_mul_f32', v(MC), 's70', v(M))
        else:
            I('v_max3_f32', v(M), v(S+0), v(S+1), v(M))
            I('v_max3_f32', v(M), v(S+2), v(S+3), v(M))
            I('v_mul_f32', v(PLO), 's70', v(M))
            I('v_sub_f32', v(AL), v(MC), v(PLO))
            I('v_mov_b32', v(MC), v(PLO))
            I('v_exp_f32', v(AL), v(AL))
        for j in range(4):
            I('v_fma_f32', v(S+j), v(S+j), 's70', '-' + v(MC))
        for j in range(4):
            I('v_exp_f32', v(S+j), v(S+j))
        if c == 0:
            I('v_add_f32', v(L), v(S+0), v(S+1))
        else:
            I('v_fma_f32', v(L), v(L), v(AL), v(S+0))
            for i in range(8): I('v_mul_f32', v(8+i), v(AL), v(8+i))
            I('v_add_f32', v(L), v(L), v(S+1))
        for j in range(4):
            I('v_cvt_pk_bf16_f32', v(PLO+j), v(S+j), 0)
            I('v_cvt_pk_bf16_f32', v(PHI+j), 0, v(S+j))
        I('v_add_f32', v(L), v(L), v(S+2))
        I('v_add_f32', v(L), v(L), v(S+3))
        A.wait_vm('V%d' % c)
        for j in range(4):
            for d in range(4):
                src = v(B(8*G+4+j)+d)
                I('v_dot2_f32_bf16', v(8+2*d), v(PLO+j), src, v(8+2*d))
                I('v_dot2_f32_bf16', v(9+2*d), v(PHI+j), src, v(9+2*d))
        if c + 3 < 8: issueV(c+3)
        elif c == 5 and not notail: issueWO(1)
    if notail:
        I('v_cmp_eq_u32', 'vcc', 512, 'v0')
        I('s_and_saveexec_b64', 's[80:81]', 'vcc')
        I('s_cbranch_execz', 'L_k1_end')
        I('v_mov_b32', 'v28', 0)
        for i in range(1, 8): I('v_add_f32', 'v8', 'v8', v(8+i))
        I('v_mov_b32', 'v9', v(L))
        I('buffer_store_dwordx2', 'v[8:9]', 'v28', 's[44:47]', 's73', mods='offen')
        I('s_branch', 'L_k1_end')
        A.vm.append('WO')
    T = 20
    def allred4(x, t, op):
        I('v_mov_b32', v(t), v(x))
        I('v_permlane32_swap_b32', v(x), v(t))
        I(op, v(x), v(x), v(t))
        I('v_mov_b32', v(t), v(x))
        I('v_permlane16_swap_b32', v(x), v(t))
        I(op, v(x), v(x), v(t))
    I('v_mov_b32', 'v22', v(MC))
    allred4(22, 23, 'v_max_f32')
    I('v_sub_f32', v(AL), v(MC), 'v22')
    I('v_exp_f32', v(AL), v(AL))
    for i in range(8): I('v_mul_f32', v(8+i), v(AL), v(8+i))
    I('v_mul_f32', 'v23', v(AL), v(L))
    dist_reduce(8)
    allred4(23, 24, 'v_add_f32')
    I('v_lshrrev_b32', 'v25', 6, 'v0')
    I('v_lshlrev_b32', 'v26', 9, 'v25')
    I('v_lshl_add_u32', 'v26', 'v3', 5, 'v26')
    I('v_bfe_u32', 'v27', 'v0', 4, 2)
    I('v_lshl_add_u32', 'v26', 'v27', 3, 'v26')
    I('ds_write_b64', 'v26', 'v[8:9]', mods='offset:%d' % OP)
    I('v_lshlrev_b32', 'v26', 3, 'v25')
    I('ds_write_b64', 'v26', 'v[22:23]', mods='offset:%d' % ML)
    I('v_lshlrev_b32', 'v26', 3, 'v3')
    I('v_lshlrev_b32', 'v27', 9, 'v3')
    I('v_lshl_add_u32', 'v27', 'v25', 5, 'v27')
    A.wait_lgkm()
    I('s_barrier')
    I('ds_read_b64', 'v[22:23]', 'v26', mods='offset:%d' % ML)
    I('ds_read_b128', 'v[8:11]', 'v27', mods='offset:%d' % OP)
    I('ds_read_b128', 'v[12:15]', 'v27', mods='offset:%d' % (OP+16))
    A.wait_lgkm()
    I('v_mov_b32', 'v16', 'v22')
    for step in (8, 4, 2, 1):
        I('v_max_f32_dpp', 'v16', 'v16', 'v16', mods='row_ror:%d row_mask:0xf bank_mask:0xf' % step)
    I('v_sub_f32', 'v19', 'v22', 'v16')
    I('v_exp_f32', 'v19', 'v19')
    I('v_mul_f32', 'v17', 'v19', 'v23')
    for i in range(8): I('v_mul_f32', v(8+i), 'v19', v(8+i))
    for step in (8, 4, 2, 1):
        I('v_add_f32_dpp', 'v17', 'v17', 'v17', mods='row_ror:%d row_mask:0xf bank_mask:0xf' % step)
        for i in range(8):
            I('v_add_f32_dpp', v(8+i), v(8+i), v(8+i), mods='row_ror:%d row_mask:0xf bank_mask:0xf' % step)
    OLO, OHI, Y = 32, 40, 48
    for i in range(8):
        I('v_cvt_pk_bf16_f32', v(OLO+i), v(8+i), 0)
        I('v_cvt_pk_bf16_f32', v(OHI+i), 0, v(8+i))
    A.wait_vm('WO')
    for j in range(8):
        for d in range(4):
            src = v(B(16+j)+d)
            I('v_dot2_f32_bf16', v(Y+2*d), v(OLO+j), src, (0 if j == 0 else v(Y+2*d)))
            I('v_dot2_f32_bf16', v(Y+2*d+1), v(OHI+j), src, (0 if j == 0 else v(Y+2*d+1)))
    I('v_and_b32', 'v26', 63, 'v0')
    I('v_lshlrev_b32', 'v26', 4, 'v26')
    I('v_lshl_add_u32', 'v26', 'v25', 11, 'v26')
    I('ds_write_b128', 'v26', vr(Y, 4), mods='offset:%d' % YP)
    I('ds_write_b128', 'v26', vr(Y+4, 4), mods='offset:%d' % (YP+1024))
    I('v_lshlrev_b32', 'v27', 2, 'v0')
    I('v_bfe_u32', 'v28', 'v0', 2, 6)
    I('v_lshlrev_b32', 'v28', 5, 'v28')
    I('v_lshrrev_b32', 'v29', 8, 'v0')
    I('v_lshl_add_u32', 'v28', 'v29', 4, 'v28')
    I('v_and_b32', 'v29', 3, 'v0')
    I('v_lshl_add_u32', 'v28', 'v29', 2, 'v28')
    A.wait_lgkm()
    I('s_barrier')
    I('v_cmp_gt_u32', 'vcc', 512, 'v0')
    I('s_and_saveexec_b64', 's[80:81]', 'vcc')
    I('s_cbranch_execz', 'L_k1_ml')
    for w in range(16):
        I('ds_read_b32', v(64+w), 'v27', mods='offset:%d' % (YP + w*2048))
    A.wait_lgkm()
    for w in range(8): I('v_add_f32', v(64+w), v(64+w), v(72+w))
    for w in range(4): I('v_add_f32', v(64+w), v(64+w), v(68+w))
    for w in range(2): I('v_add_f32', v(64+w), v(64+w), v(66+w))
    I('v_add_f32', 'v64', 'v64', 'v65')
    I('buffer_store_dword', 'v64', 'v28', 's[44:47]', 's72', mods='offen')
    A.label('L_k1_ml')
    I('s_mov_b64', 'exec', 's[80:81]')
    I('v_cmp_eq_u32', 'vcc', 512, 'v0')
    I('s_and_saveexec_b64', 's[80:81]', 'vcc')
    I('s_cbranch_execz', 'L_k1_end')
    I('v_mov_b32', 'v28', 0)
    I('buffer_store_dwordx2', 'v[16:17]', 'v28', 's[44:47]', 's73', mods='offen')
    A.label('L_k1_end')
    I('s_endpgm')

    A2 = Asm(); I = A2.I
    A2.raw('.globl %s' % K2)
    A2.raw('.p2align 8')
    A2.raw('.type %s,@function' % K2)
    A2.label(K2)
    I('s_cmp_ge_u32', 's2', 32)
    I('s_cbranch_scc1', 'L_k2_end')
    I('s_load_dwordx2', 's[4:5]', 's[0:1]', 80)
    I('s_load_dwordx2', 's[6:7]', 's[0:1]', 96)
    I('s_lshr_b32', 's3', 's2', 4)
    I('s_and_b32', 's16', 's2', 15)
    I('s_lshl_b32', 's17', 's3', 18)
    I('s_lshl_b32', 's18', 's16', 7)
    I('s_add_u32', 's17', 's17', 's18')
    I('s_add_u32', 's18', 's17', 4096)
    I('s_lshl_b32', 's19', 's3', 10)
    I('s_add_u32', 's19', 's19', 524288)
    I('s_lshl_b32', 's20', 's3', 10)
    I('s_lshl_b32', 's21', 's16', 6)
    I('s_add_u32', 's20', 's20', 's21')
    I('v_lshrrev_b32', 'v1', 3, 'v0')
    I('v_and_b32', 'v2', 7, 'v0')
    I('v_lshlrev_b32', 'v2', 4, 'v2')
    I('v_lshl_add_u32', 'v2', 'v1', 13, 'v2')
    I('v_lshlrev_b32', 'v3', 5, 'v1')
    A2.wait_lgkm()
    I('s_mov_b32', 's8', 's6'); I('s_mov_b32', 's9', 's7'); I('s_mov_b32', 's10', 526336); I('s_mov_b32', 's11', '0x00020000')
    I('s_mov_b32', 's12', 's4'); I('s_mov_b32', 's13', 's5'); I('s_mov_b32', 's14', 2048); I('s_mov_b32', 's15', '0x00020000')
    I('buffer_load_dwordx4', 'v[4:7]', 'v3', 's[8:11]', 's19', mods='offen', tag='ml')
    I('buffer_load_dwordx4', 'v[8:11]', 'v3', 's[8:11]', 's19', mods='offen offset:16', tag='ml')
    I('buffer_load_dwordx4', 'v[12:15]', 'v2', 's[8:11]', 's17', mods='offen', tag='y')
    I('buffer_load_dwordx4', 'v[16:19]', 'v2', 's[8:11]', 's17', mods='offen offset:2048', tag='y')
    I('buffer_load_dwordx4', 'v[20:23]', 'v2', 's[8:11]', 's18', mods='offen', tag='y')
    I('buffer_load_dwordx4', 'v[24:27]', 'v2', 's[8:11]', 's18', mods='offen offset:2048', tag='y')
    A2.wait_vm('ml')
    I('v_max_f32', 'v28', 'v4', 'v6')
    I('v_max3_f32', 'v28', 'v8', 'v10', 'v28')
    for k, r in enumerate((4, 6, 8, 10)):
        I('v_sub_f32', v(r), v(r), 'v28')
    for k, r in enumerate((4, 6, 8, 10)):
        I('v_exp_f32', v(r), v(r))
    I('v_mul_f32', 'v29', 'v4', 'v5')
    I('v_fma_f32', 'v29', 'v6', 'v7', 'v29')
    I('v_fma_f32', 'v29', 'v8', 'v9', 'v29')
    I('v_fma_f32', 'v29', 'v10', 'v11', 'v29')
    I('v_rcp_f32', 'v29', 'v29')
    for r in (4, 6, 8, 10):
        I('v_mul_f32', v(r), v(r), 'v29')
    A2.wait_vm('y')
    for k in range(4):
        I('v_mul_f32', v(12+k), 'v4', v(12+k))
    for k in range(4):
        I('v_fma_f32', v(12+k), 'v6', v(16+k), v(12+k))
    for k in range(4):
        I('v_fma_f32', v(12+k), 'v8', v(20+k), v(12+k))
    for k in range(4):
        I('v_fma_f32', v(12+k), 'v10', v(24+k), v(12+k))
    I('v_lshlrev_b32', 'v1', 4, 'v0')
    I('ds_write_b128', 'v1', 'v[12:15]')
    I('v_lshlrev_b32', 'v2', 2, 'v0')
    I('v_lshlrev_b32', 'v3', 1, 'v0')
    A2.wait_lgkm()
    I('s_barrier')
    I('v_cmp_gt_u32', 'vcc', 32, 'v0')
    I('s_and_saveexec_b64', 's[22:23]', 'vcc')
    I('s_cbranch_execz', 'L_k2_end')
    for h in range(32):
        I('ds_read_b32', v(4+h), 'v2', mods='offset:%d' % (h*128))
    A2.wait_lgkm()
    n = 32
    while n > 1:
        n //= 2
        for i in range(n): I('v_add_f32', v(4+i), v(4+i), v(4+n+i))
    I('v_cvt_pk_bf16_f32', 'v4', 'v4', 0)
    I('buffer_store_short', 'v4', 'v3', 's[12:15]', 's20', mods='offen')
    A2.label('L_k2_end')
    I('s_endpgm')

    out = A.text() + A2.text()
    out += '''.section .rodata,"a"
.p2align 6
.amdhsa_kernel %s
  .amdhsa_next_free_vgpr 128
  .amdhsa_next_free_sgpr 102
  .amdhsa_accum_offset 128
  .amdhsa_group_segment_fixed_size 0
  .amdhsa_kernarg_size 104
  .amdhsa_user_sgpr_count 2
  .amdhsa_user_sgpr_kernarg_segment_ptr 1
  .amdhsa_system_sgpr_workgroup_id_x 1
.end_amdhsa_kernel
.p2align 6
.amdhsa_kernel %s
  .amdhsa_next_free_vgpr 40
  .amdhsa_next_free_sgpr 32
  .amdhsa_accum_offset 40
  .amdhsa_group_segment_fixed_size 0
  .amdhsa_kernarg_size 104
  .amdhsa_user_sgpr_count 2
  .amdhsa_user_sgpr_kernarg_segment_ptr 1
  .amdhsa_system_sgpr_workgroup_id_x 1
.end_amdhsa_kernel
''' % (K1, K2)
    return out

if __name__ == '__main__':
    import argparse
    ap = argparse.ArgumentParser()
    ap.add_argument('--pattern', default='P2')
    ap.add_argument('--kvmod', default='nt')
    ap.add_argument('--wmod', default='')
    ap.add_argument('--nocompute', action='store_true')
    ap.add_argument('--noq', action='store_true')
    ap.add_argument('--notail', action='store_true')
    ap.add_argument('-o', default='cdna_kernels/%s.s' % NAME)
    a = ap.parse_args()
    open(a.o, 'w').write(gen(a.pattern, a.kvmod, a.wmod, a.nocompute, a.noq, a.notail))
```

```python
import sys, math
sys.path.insert(0, 'gen')
from asmlib import *

NAME = 'concat_heads__mha_block_cached__gqa_block_cached__decode'
HEADER = open('cdna_kernels/%s.s.ref' % NAME).read().split('; @launch')[0]

def gen(CL=4, D=2, pattern='P2', kvmod='nt', wmod='', nocompute=False, noq=False, notail=False, wo_at=None):
    A = Asm()
    I = A.I
    QS, OP, ML, YP = 8192, 12288, 20480, 21504
    LDS1 = YP + 32768
    K1 = NAME + '_kernel'
    K2 = 'concat_heads_combine_kernel'
    NC = 32 // CL
    shared = (D * CL > 8)
    assert D * CL <= 12
    A.raw(HEADER.rstrip('\n'))
    A.raw('; @launch kernel=%s grid=(256,1,1) block=(1024,1,1) lds=%d' % (K1, LDS1))
    A.raw('; @launch kernel=%s grid=(32,1,1) block=(256,1,1) lds=4096' % K2)
    A.raw('.amdgcn_target "amdgcn-amd-amdhsa--gfx950"')
    A.raw('.text')
    A.raw('.globl %s' % K1)
    A.raw('.p2align 8')
    A.raw('.type %s,@function' % K1)
    A.label(K1)
    I('s_cmp_ge_u32', 's2', 256)
    I('s_cbranch_scc1', 'L_k1_end')
    I('s_and_b32', 's3', 's2', 7)
    I('s_lshr_b32', 's4', 's2', 3)
    I('s_and_b32', 's5', 's4', 3)
    I('s_lshr_b32', 's4', 's2', 5)
    I('s_lshl_b32', 's4', 's4', 3)
    I('s_add_u32', 's4', 's4', 's3')
    I('s_lshr_b32', 's6', 's4', 5)
    I('s_and_b32', 's7', 's4', 31)
    I('s_mul_i32', 's8', 's6', 40)
    I('s_load_dwordx4', 's[12:15]', 's[0:1]', 's8')
    I('s_load_dwordx4', 's[16:19]', 's[0:1]', 's8', mods='offset:16')
    I('s_load_dwordx2', 's[20:21]', 's[0:1]', 's8', mods='offset:32')
    I('s_load_dwordx2', 's[22:23]', 's[0:1]', 96)
    I('v_and_b32', 'v19', '0x3f0', 'v0')
    I('v_lshrrev_b32', 'v18', 4, 'v0')
    I('v_lshlrev_b32', 'v18', 16, 'v18')
    I('v_and_b32', 'v3', 15, 'v0')
    I('v_lshl_add_u32', 'v18', 'v3', 4, 'v18')
    I('v_and_b32', 'v17', 63, 'v0')
    I('v_lshlrev_b32', 'v17', 4, 'v17')
    I('v_lshrrev_b32', 'v16', 6, 'v0')
    lg = {1: 10, 2: 11, 4: 12}[CL]
    if pattern == 'P1':
        I('v_lshl_add_u32', 'v1', 'v16', 15, 'v17')
        CSTR = 1024 * CL
        JSTR = 1024
    elif pattern == 'P2':
        I('v_lshl_add_u32', 'v1', 'v16', lg, 'v17')
        CSTR = 1024 * CL * 16
        JSTR = 1024
    elif pattern == 'P3':
        I('v_lshl_add_u32', 'v1', 'v16', 10, 'v17')
        CSTR = 1024 * CL * 16
        JSTR = 16384
    I('v_lshl_add_u32', 'v2', 'v16', 13, 'v17')
    I('s_lshl_b32', 's48', 's7', 21)
    I('s_lshl_b32', 's49', 's5', 19)
    I('s_add_u32', 's50', 's48', 's49')
    I('s_lshl_b32', 's60', 's7', 8)
    for j in range(1, 8):
        I('s_add_u32', s(60+j), s(59+j), 8192)
    I('s_lshl_b32', 's68', 's7', 17)
    I('s_add_u32', 's69', 's68', 4096)
    I('s_mov_b32', 's70', '0x%08x' % f2u(math.log2(math.e) / math.sqrt(128.0)))
    I('s_lshl_b32', 's71', 's4', 2)
    I('s_add_u32', 's71', 's71', 's5')
    I('s_lshl_b32', 's72', 's71', 11)
    I('s_lshl_b32', 's73', 's71', 3)
    I('s_add_u32', 's73', 's73', 524288)
    A.wait_lgkm()
    def srd(d, lo, nbytes):
        I('s_mov_b32', s(d), s(lo))
        I('s_mov_b32', s(d+1), s(lo+1))
        I('s_mov_b32', s(d+2), nbytes)
        I('s_mov_b32', s(d+3), '0x00020000')
    srd(24, 12, 1024)
    srd(36, 18, 4194304)
    srd(28, 14, 67108864)
    srd(32, 16, 67108864)
    srd(40, 20, 4194304)
    srd(44, 22, 526336)
    B = lambda i: 32 + 4*i
    WB = 16
    def KB(c, j): return B((c % D) * 2 * CL + j)
    def VB(c, j): return B((c % D) * 2 * CL + CL + j)
    if not noq:
        I('buffer_load_dwordx4', vr(4, 4), 'v19', 's[24:27]', 0, mods='offen', tag='wq')
        for j in range(8):
            I('buffer_load_dwordx4', vr(B(WB+j), 4), 'v18', 's[36:39]', s(60+j), mods=('offen ' + wmod).strip(), tag='wq')
    def issue(c, srdname, bufs, tag):
        for j in range(CL):
            off = c * CSTR + j * JSTR
            imm = off % 4096
            so = off - imm
            I('s_add_u32', 's51', 's50', so)
            I('buffer_load_dwordx4', vr(bufs(c, j), 4), 'v1', srdname, 's51', mods=('offen offset:%d ' % imm + kvmod).strip(), tag=tag)
    def issueK(c): issue(c, 's[28:31]', KB, 'K%d' % c)
    def issueV(c): issue(c, 's[32:35]', VB, 'V%d' % c)
    def issueWO(half):
        for j in range(4):
            I('buffer_load_dwordx4', vr(B(WB+4*half+j), 4), 'v2', 's[40:43]', s(68+half), mods=('offen offset:%d ' % (1024*j) + wmod).strip(), tag='WO')
    npre = D - 1 if shared else D
    for c in range(npre):
        issueK(c); issueV(c)
    def dist_reduce(a):
        for i in range(4): I('v_permlane32_swap_b32', v(a+i), v(a+i+4))
        for i in range(4): I('v_add_f32', v(a+i), v(a+i), v(a+i+4))
        for i in range(2): I('v_permlane16_swap_b32', v(a+i), v(a+i+2))
        for i in range(2): I('v_add_f32', v(a+i), v(a+i), v(a+i+2))
    if noq:
        if shared: issueK(D-1); issueV(D-1)
        for i in range(4): I('v_mov_b32', v(4+i), '0x3f803f80')
        for i in range(8): I('v_mov_b32', v(8+i), 0)
    else:
        A.wait_vm('wq')
        for j in range(8):
            xd = v(4 + j//2)
            if j % 2 == 0:
                I('v_and_b32', v(16+j), '0xffff', xd)
                I('v_lshlrev_b32', v(24+j), 16, xd)
            else:
                I('v_lshrrev_b32', v(16+j), 16, xd)
                I('v_and_b32', v(24+j), '0xffff0000', xd)
        for j in range(8):
            for d in range(4):
                src = v(B(WB+j)+d)
                I('v_dot2_f32_bf16', v(8+2*d), v(16+j), src, (0 if j == 0 else v(8+2*d)))
                I('v_dot2_f32_bf16', v(9+2*d), v(24+j), src, (0 if j == 0 else v(9+2*d)))
        if shared: issueK(D-1); issueV(D-1)
        dist_reduce(8)
        I('v_lshrrev_b32', 'v16', 6, 'v0')
        I('v_lshlrev_b32', 'v16', 9, 'v16')
        I('v_lshl_add_u32', 'v16', 'v3', 5, 'v16')
        I('v_bfe_u32', 'v17', 'v0', 4, 2)
        I('v_lshl_add_u32', 'v16', 'v17', 3, 'v16')
        I('ds_write_b64', 'v16', 'v[8:9]')
        I('v_lshlrev_b32', 'v18', 11, 'v17')
        I('v_lshl_add_u32', 'v18', 'v3', 5, 'v18')
        A.wait_lgkm()
        I('s_barrier')
        I('ds_read_b128', 'v[8:11]', 'v18', mods='offset:0')
        I('ds_read_b128', 'v[12:15]', 'v18', mods='offset:16')
        I('ds_read_b128', 'v[20:23]', 'v18', mods='offset:512')
        I('ds_read_b128', 'v[24:27]', 'v18', mods='offset:528')
        A.wait_lgkm()
        for i in range(8): I('v_add_f32', v(8+i), v(8+i), v(20+i))
        I('ds_read_b128', 'v[20:23]', 'v18', mods='offset:1024')
        I('ds_read_b128', 'v[24:27]', 'v18', mods='offset:1040')
        A.wait_lgkm()
        for i in range(8): I('v_add_f32', v(8+i), v(8+i), v(20+i))
        I('ds_read_b128', 'v[20:23]', 'v18', mods='offset:1536')
        I('ds_read_b128', 'v[24:27]', 'v18', mods='offset:1552')
        A.wait_lgkm()
        for i in range(8): I('v_add_f32', v(8+i), v(8+i), v(20+i))
        dist_reduce(8)
        I('v_cvt_pk_bf16_f32', 'v8', 'v8', 'v9')
        I('v_lshrrev_b32', 'v18', 6, 'v0')
        I('v_lshlrev_b32', 'v18', 8, 'v18')
        I('v_lshl_add_u32', 'v18', 'v3', 4, 'v18')
        I('v_lshl_add_u32', 'v19', 'v17', 2, 'v18')
        I('ds_write_b32', 'v19', 'v8', mods='offset:%d' % QS)
        A.wait_lgkm()
        I('ds_read_b128', 'v[4:7]', 'v18', mods='offset:%d' % QS)
        for i in range(8): I('v_mov_b32', v(8+i), 0)
        A.wait_lgkm()
    M, MC, L, AL = 16, 17, 18, 19
    S, PLO, PHI = 20, 24, 28
    if shared:
        woK = woV = NC - D
        lastc = max(c for c in range(NC) if c % D == D - 1)
        woK = woV = lastc
    else:
        woK = woV = (NC - D if wo_at is None else wo_at)
    for c in range(NC):
        A.comment('chunk %d' % c)
        A.wait_vm('K%d' % c)
        if not nocompute:
            for d in range(4):
                for j in range(CL):
                    I('v_dot2_f32_bf16', v(S+j), v(4+d), v(KB(c, j)+d), (0 if d == 0 else v(S+j)))
        if c + D < NC: issueK(c+D)
        if c == woK and not notail: issueWO(0)
        if not nocompute:
            for step in (8, 4, 2, 1):
                for j in range(CL):
                    I('v_add_f32_dpp', v(S+j), v(S+j), v(S+j), mods='row_ror:%d row_mask:0xf bank_mask:0xf' % step)
            if c == 0:
                if CL == 1: I('v_mov_b32', v(M), v(S))
                else: I('v_max_f32', v(M), v(S+0), v(S+1))
                if CL == 4: I('v_max3_f32', v(M), v(S+2), v(S+3), v(M))
                I('v_mul_f32', v(MC), 's70', v(M))
            else:
                if CL == 1: I('v_max_f32', v(M), v(S), v(M))
                else: I('v_max3_f32', v(M), v(S+0), v(S+1), v(M))
                if CL == 4: I('v_max3_f32', v(M), v(S+2), v(S+3), v(M))
                I('v_mul_f32', v(PLO), 's70', v(M))
                I('v_sub_f32', v(AL), v(MC), v(PLO))
                I('v_mov_b32', v(MC), v(PLO))
                I('v_exp_f32', v(AL), v(AL))
            for j in range(CL):
                I('v_fma_f32', v(S+j), v(S+j), 's70', '-' + v(MC))
            for j in range(CL):
                I('v_exp_f32', v(S+j), v(S+j))
            if c == 0:
                I('v_mov_b32', v(L), v(S+0))
            else:
                I('v_fma_f32', v(L), v(L), v(AL), v(S+0))
                for i in range(8): I('v_mul_f32', v(8+i), v(AL), v(8+i))
            for j in range(CL):
                I('v_cvt_pk_bf16_f32', v(PLO+j), v(S+j), 0)
                I('v_cvt_pk_bf16_f32', v(PHI+j), 0, v(S+j))
            for j in range(1, CL):
                I('v_add_f32', v(L), v(L), v(S+j))
        A.wait_vm('V%d' % c)
        if not nocompute:
            for j in range(CL):
                for d in range(4):
                    src = v(VB(c, j)+d)
                    I('v_dot2_f32_bf16', v(8+2*d), v(PLO+j), src, v(8+2*d))
                    I('v_dot2_f32_bf16', v(9+2*d), v(PHI+j), src, v(9+2*d))
        if c + D < NC: issueV(c+D)
        if c == woV and not notail: issueWO(1)
    if notail:
        I('v_cmp_eq_u32', 'vcc', 512, 'v0')
        I('s_and_saveexec_b64', 's[80:81]', 'vcc')
        I('s_cbranch_execz', 'L_k1_end')
        I('v_mov_b32', 'v28', 0)
        for i in range(1, 8): I('v_add_f32', 'v8', 'v8', v(8+i))
        I('v_mov_b32', 'v9', v(L))
        I('buffer_store_dwordx2', 'v[8:9]', 'v28', 's[44:47]', 's73', mods='offen')
        I('s_branch', 'L_k1_end')
        A.vm.append('WO')
    def allred4(x, t, op):
        I('v_mov_b32', v(t), v(x))
        I('v_permlane32_swap_b32', v(x), v(t))
        I(op, v(x), v(x), v(t))
        I('v_mov_b32', v(t), v(x))
        I('v_permlane16_swap_b32', v(x), v(t))
        I(op, v(x), v(x), v(t))
    I('v_mov_b32', 'v22', v(MC))
    allred4(22, 23, 'v_max_f32')
    I('v_sub_f32', v(AL), v(MC), 'v22')
    I('v_exp_f32', v(AL), v(AL))
    for i in range(8): I('v_mul_f32', v(8+i), v(AL), v(8+i))
    I('v_mul_f32', 'v23', v(AL), v(L))
    dist_reduce(8)
    allred4(23, 24, 'v_add_f32')
    I('v_lshrrev_b32', 'v25', 6, 'v0')
    I('v_lshlrev_b32', 'v26', 9, 'v25')
    I('v_lshl_add_u32', 'v26', 'v3', 5, 'v26')
    I('v_bfe_u32', 'v27', 'v0', 4, 2)
    I('v_lshl_add_u32', 'v26', 'v27', 3, 'v26')
    I('ds_write_b64', 'v26', 'v[8:9]', mods='offset:%d' % OP)
    I('v_lshlrev_b32', 'v26', 3, 'v25')
    I('ds_write_b64', 'v26', 'v[22:23]', mods='offset:%d' % ML)
    I('v_lshlrev_b32', 'v26', 3, 'v3')
    I('v_lshlrev_b32', 'v27', 9, 'v3')
    I('v_lshl_add_u32', 'v27', 'v25', 5, 'v27')
    A.wait_lgkm()
    I('s_barrier')
    I('ds_read_b64', 'v[22:23]', 'v26', mods='offset:%d' % ML)
    I('ds_read_b128', 'v[8:11]', 'v27', mods='offset:%d' % OP)
    I('ds_read_b128', 'v[12:15]', 'v27', mods='offset:%d' % (OP+16))
    A.wait_lgkm()
    I('v_mov_b32', 'v16', 'v22')
    for step in (8, 4, 2, 1):
        I('v_max_f32_dpp', 'v16', 'v16', 'v16', mods='row_ror:%d row_mask:0xf bank_mask:0xf' % step)
    I('v_sub_f32', 'v19', 'v22', 'v16')
    I('v_exp_f32', 'v19', 'v19')
    I('v_mul_f32', 'v17', 'v19', 'v23')
    for i in range(8): I('v_mul_f32', v(8+i), 'v19', v(8+i))
    for step in (8, 4, 2, 1):
        I('v_add_f32_dpp', 'v17', 'v17', 'v17', mods='row_ror:%d row_mask:0xf bank_mask:0xf' % step)
        for i in range(8):
            I('v_add_f32_dpp', v(8+i), v(8+i), v(8+i), mods='row_ror:%d row_mask:0xf bank_mask:0xf' % step)
    OLO, OHI, Y = 32, 40, 48
    for i in range(8):
        I('v_cvt_pk_bf16_f32', v(OLO+i), v(8+i), 0)
        I('v_cvt_pk_bf16_f32', v(OHI+i), 0, v(8+i))
    A.wait_vm('WO')
    for j in range(8):
        for d in range(4):
            src = v(B(WB+j)+d)
            I('v_dot2_f32_bf16', v(Y+2*d), v(OLO+j), src, (0 if j == 0 else v(Y+2*d)))
            I('v_dot2_f32_bf16', v(Y+2*d+1), v(OHI+j), src, (0 if j == 0 else v(Y+2*d+1)))
    I('v_and_b32', 'v26', 63, 'v0')
    I('v_lshlrev_b32', 'v26', 4, 'v26')
    I('v_lshl_add_u32', 'v26', 'v25', 11, 'v26')
    I('ds_write_b128', 'v26', vr(Y, 4), mods='offset:%d' % YP)
    I('ds_write_b128', 'v26', vr(Y+4, 4), mods='offset:%d' % (YP+1024))
    I('v_lshlrev_b32', 'v27', 2, 'v0')
    I('v_bfe_u32', 'v28', 'v0', 2, 6)
    I('v_lshlrev_b32', 'v28', 5, 'v28')
    I('v_lshrrev_b32', 'v29', 8, 'v0')
    I('v_lshl_add_u32', 'v28', 'v29', 4, 'v28')
    I('v_and_b32', 'v29', 3, 'v0')
    I('v_lshl_add_u32', 'v28', 'v29', 2, 'v28')
    A.wait_lgkm()
    I('s_barrier')
    I('v_cmp_gt_u32', 'vcc', 512, 'v0')
    I('s_and_saveexec_b64', 's[80:81]', 'vcc')
    I('s_cbranch_execz', 'L_k1_ml')
    for w in range(16):
        I('ds_read_b32', v(64+w), 'v27', mods='offset:%d' % (YP + w*2048))
    A.wait_lgkm()
    for w in range(8): I('v_add_f32', v(64+w), v(64+w), v(72+w))
    for w in range(4): I('v_add_f32', v(64+w), v(64+w), v(68+w))
    for w in range(2): I('v_add_f32', v(64+w), v(64+w), v(66+w))
    I('v_add_f32', 'v64', 'v64', 'v65')
    I('buffer_store_dword', 'v64', 'v28', 's[44:47]', 's72', mods='offen')
    A.label('L_k1_ml')
    I('s_mov_b64', 'exec', 's[80:81]')
    I('v_cmp_eq_u32', 'vcc', 512, 'v0')
    I('s_and_saveexec_b64', 's[80:81]', 'vcc')
    I('s_cbranch_execz', 'L_k1_end')
    I('v_mov_b32', 'v28', 0)
    I('buffer_store_dwordx2', 'v[16:17]', 'v28', 's[44:47]', 's73', mods='offen')
    A.label('L_k1_end')
    I('s_endpgm')

    import gen1
    full = gen1.gen()
    k2txt = full[full.index('.globl concat_heads_combine_kernel'):]
    return A.text() + k2txt

if __name__ == '__main__':
    import argparse
    ap = argparse.ArgumentParser()
    ap.add_argument('--CL', type=int, default=4)
    ap.add_argument('--D', type=int, default=2)
    ap.add_argument('--pattern', default='P2')
    ap.add_argument('--kvmod', default='nt')
    ap.add_argument('--wmod', default='')
    ap.add_argument('--nocompute', action='store_true')
    ap.add_argument('--noq', action='store_true')
    ap.add_argument('--notail', action='store_true')
    ap.add_argument('--wo_at', type=int, default=None)
    ap.add_argument('-o', default='cdna_kernels/%s.s' % NAME)
    a = ap.parse_args()
    open(a.o, 'w').write(gen(a.CL, a.D, a.pattern, a.kvmod, a.wmod, a.nocompute, a.noq, a.notail, a.wo_at))
```

```python
import sys, math
sys.path.insert(0, 'gen')
from asmlib import *

NAME = 'concat_heads__mha_block_cached__gqa_block_cached__decode'
HEADER = open('cdna_kernels/%s.s.ref' % NAME).read().split('; @launch')[0]
K1 = NAME + '_kernel'
K2 = 'concat_heads_combine_kernel'

def gen_k1(W=16, CL=4, D=2, kvmod='nt', wmod='', rot=3, exp='', wo_at=2, perm_at=5, prio=False):
    A = Asm()
    I = A.I
    LGW = {4: 2, 8: 3, 16: 4}[W]
    NW = 128 // W
    R = NW
    LGR = {8: 3, 16: 4, 32: 5}[R]
    QS = W * 512
    OP = QS + W * 256
    ML = OP + W * 512
    YP = ML + 1024
    LDS1 = YP + W * 2048
    NC = (512 // W) // CL
    LGC = {2: 11, 4: 12, 8: 13}[CL]
    CSTR = 1024 * CL * W
    stamps = 'stamp' in exp
    if W == 16:
        WB0 = 96; KV0 = 32; NV = 128
        assert D * CL * 8 <= 64
    elif W == 8:
        WB0 = 32; KV0 = 96; NV = 256
        assert D * CL * 8 <= 160
    else:
        WB0 = 32; KV0 = 160; NV = 256
        assert D * CL * 8 <= 64
    WBUF = lambda j: WB0 + 4*j
    def KB(c, j): return KV0 + ((c % D) * 2 * CL + j) * 4
    def VB(c, j): return KV0 + ((c % D) * 2 * CL + CL + j) * 4
    def stamp(k):
        if not stamps: return
        I('s_memrealtime', sr(84 + 2*k, 2))
        A.wait_lgkm()
    A.raw('.globl %s' % K1)
    A.raw('.p2align 8')
    A.raw('.type %s,@function' % K1)
    A.label(K1)
    I('s_cmp_ge_u32', 's2', 256)
    I('s_cbranch_scc1', 'L_k1_end')
    stamp(0)
    I('s_and_b32', 's3', 's2', 7)
    I('s_lshr_b32', 's4', 's2', 3)
    I('s_and_b32', 's5', 's4', 3)
    I('s_lshr_b32', 's4', 's2', 5)
    I('s_lshl_b32', 's4', 's4', 3)
    I('s_add_u32', 's4', 's4', 's3')
    I('s_lshr_b32', 's6', 's4', 5)
    I('s_and_b32', 's7', 's4', 31)
    I('s_mul_i32', 's8', 's6', 40)
    I('s_load_dwordx4', 's[12:15]', 's[0:1]', 's8')
    I('s_load_dwordx4', 's[16:19]', 's[0:1]', 's8', mods='offset:16')
    I('s_load_dwordx2', 's[20:21]', 's[0:1]', 's8', mods='offset:32')
    I('s_load_dwordx2', 's[22:23]', 's[0:1]', 96)
    I('v_lshrrev_b32', 'v18', 4, 'v0')
    I('v_lshlrev_b32', 'v19', LGR + 1, 'v18')
    I('v_lshlrev_b32', 'v18', 13 + LGR, 'v18')
    I('v_and_b32', 'v3', 15, 'v0')
    I('v_lshl_add_u32', 'v18', 'v3', 4, 'v18')
    I('v_and_b32', 'v17', 63, 'v0')
    I('v_lshlrev_b32', 'v17', 4, 'v17')
    I('v_lshrrev_b32', 'v16', 6, 'v0')
    I('v_lshl_add_u32', 'v1', 'v16', LGC, 'v17')
    I('v_lshl_add_u32', 'v2', 'v16', 10 + LGR, 'v17')
    I('s_lshl_b32', 's48', 's7', 21)
    I('s_lshl_b32', 's49', 's5', 19)
    I('s_add_u32', 's50', 's48', 's49')
    if rot == 3:
        I('s_mul_i32', 's52', 's3', max(NC // 8, 1))
    else:
        I('s_mov_b32', 's52', 0)
    I('s_lshl_b32', 's60', 's7', 8)
    I('s_lshl_b32', 's68', 's7', 17)
    I('s_mov_b32', 's70', '0x%08x' % f2u(math.log2(math.e) / math.sqrt(128.0)))
    I('s_lshl_b32', 's71', 's4', 2)
    I('s_add_u32', 's71', 's71', 's5')
    I('s_lshl_b32', 's72', 's71', 11)
    I('s_lshl_b32', 's73', 's71', 3)
    I('s_add_u32', 's73', 's73', 524288)
    I('s_mov_b32', 's74', '0x05040100')
    I('s_mov_b32', 's75', '0x07060302')
    A.wait_lgkm()
    def srd(d, lo, nbytes):
        I('s_mov_b32', s(d), s(lo))
        I('s_mov_b32', s(d+1), s(lo+1))
        I('s_mov_b32', s(d+2), nbytes)
        I('s_mov_b32', s(d+3), '0x00020000')
    srd(24, 12, 1024)
    srd(36, 18, 4194304)
    XR = 20 if W >= 8 else 224
    for k in range(NW // 8):
        I('buffer_load_dwordx4', vr(XR + 4*k, 4), 'v19', 's[24:27]', 0, mods='offen offset:%d' % (16*k), tag='wq')
    for j in range(NW):
        I('buffer_load_dwordx4', vr(WBUF(j), 4), 'v18', 's[36:39]', 's60', mods=('offen ' + wmod).strip(), tag='wq')
        if j < NW - 1: I('s_add_u32', 's60', 's60', 8192)
    srd(28, 14, 67108864)
    srd(32, 16, 67108864)
    srd(40, 20, 4194304)
    srd(44, 22, 526336)
    if prio: I('s_barrier')
    def issue(c, srdname, bufs, tag):
        I('s_add_u32', 's53', 's52', c)
        I('s_and_b32', 's53', 's53', NC - 1)
        I('s_mul_i32', 's53', 's53', CSTR)
        I('s_add_u32', 's53', 's53', 's50')
        for j in range(CL):
            off = j * 1024
            if off >= 4096 and off % 4096 == 0: I('s_add_u32', 's53', 's53', 4096)
            I('buffer_load_dwordx4', vr(bufs(c, j), 4), 'v1', srdname, 's53', mods=('offen offset:%d ' % (off % 4096) + kvmod).strip(), tag=tag)
    def issueK(c): issue(c, 's[28:31]', KB, 'K%d' % c)
    def issueV(c): issue(c, 's[32:35]', VB, 'V%d' % c)
    def issueWO():
        for j in range(NW):
            if j and j % 4 == 0: I('s_add_u32', 's68', 's68', 4096)
            I('buffer_load_dwordx4', vr(WBUF(j), 4), 'v2', 's[40:43]', 's68', mods=('offen offset:%d ' % (1024*(j % 4)) + wmod).strip(), tag='WO')
    for c in range(D):
        issueK(c); issueV(c)
    def dist_reduce(a):
        for i in range(4): I('v_permlane32_swap_b32', v(a+i), v(a+i+4))
        for i in range(4): I('v_add_f32', v(a+i), v(a+i), v(a+i+4))
        for i in range(2): I('v_permlane16_swap_b32', v(a+i), v(a+i+2))
        for i in range(2): I('v_add_f32', v(a+i), v(a+i), v(a+i+2))
    A.wait_vm('wq')
    for j in range(NW):
        xd = v(XR + j//2)
        tl, th = (4, 5) if j % 2 == 0 else (6, 7)
        if j % 2 == 0:
            I('v_and_b32', v(tl), '0xffff', xd)
            I('v_lshlrev_b32', v(th), 16, xd)
        else:
            I('v_lshrrev_b32', v(tl), 16, xd)
            I('v_and_b32', v(th), '0xffff0000', xd)
        for d in range(4):
            src = v(WBUF(j)+d)
            I('v_dot2_f32_bf16', v(8+2*d), v(tl), src, (0 if j == 0 else v(8+2*d)))
            I('v_dot2_f32_bf16', v(9+2*d), v(th), src, (0 if j == 0 else v(9+2*d)))
    dist_reduce(8)
    I('v_lshrrev_b32', 'v16', 6, 'v0')
    I('v_lshlrev_b32', 'v16', 9, 'v16')
    I('v_lshl_add_u32', 'v16', 'v3', 5, 'v16')
    I('v_bfe_u32', 'v17', 'v0', 4, 2)
    I('v_lshl_add_u32', 'v16', 'v17', 3, 'v16')
    I('ds_write_b64', 'v16', 'v[8:9]')
    KW = W // 4
    I('v_mul_u32_u24', 'v18', KW * 512, 'v17')
    I('v_lshl_add_u32', 'v18', 'v3', 5, 'v18')
    A.wait_lgkm()
    I('s_barrier')
    I('ds_read_b128', 'v[8:11]', 'v18', mods='offset:0')
    I('ds_read_b128', 'v[12:15]', 'v18', mods='offset:16')
    for k in range(1, KW):
        I('ds_read_b128', 'v[20:23]', 'v18', mods='offset:%d' % (512*k))
        I('ds_read_b128', 'v[24:27]', 'v18', mods='offset:%d' % (512*k+16))
        A.wait_lgkm()
        for i in range(8): I('v_add_f32', v(8+i), v(8+i), v(20+i))
    dist_reduce(8)
    I('v_cvt_pk_bf16_f32', 'v8', 'v8', 'v9')
    I('v_lshrrev_b32', 'v18', 6, 'v0')
    I('v_lshlrev_b32', 'v18', 8, 'v18')
    I('v_lshl_add_u32', 'v18', 'v3', 4, 'v18')
    I('v_lshl_add_u32', 'v19', 'v17', 2, 'v18')
    I('ds_write_b32', 'v19', 'v8', mods='offset:%d' % QS)
    A.wait_lgkm()
    I('ds_read_b128', 'v[4:7]', 'v18', mods='offset:%d' % QS)
    for i in range(8): I('v_mov_b32', v(8+i), 0)
    A.wait_lgkm()
    stamp(1)
    M, MC, L, AL = 16, 17, 18, 19
    S, PLO, PHI = 20, 24, 28
    assert CL <= 4
    pairs = [(WBUF(j)+d, WBUF(j+1)+d) for j in range(0, NW, 2) for d in range(4)]
    LO = {}; HI = {}
    for k, (w0, w1) in enumerate(pairs):
        LO[k] = 2 if k == 0 else pairs[k-1][0]
        HI[k] = w1
    for c in range(NC):
        A.comment('chunk %d' % c)
        A.wait_vm('K%d' % c)
        for d in range(4):
            for j in range(CL):
                I('v_dot2_f32_bf16', v(S+j), v(4+d), v(KB(c, j)+d), (0 if d == 0 else v(S+j)))
        if c + D < NC: issueK(c+D)
        for step in (8, 4, 2, 1):
            for j in range(CL):
                I('v_add_f32_dpp', v(S+j), v(S+j), v(S+j), mods='row_ror:%d row_mask:0xf bank_mask:0xf' % step)
        if c == 0:
            I('v_max_f32', v(M), v(S+0), v(S+1))
            if CL == 4: I('v_max3_f32', v(M), v(S+2), v(S+3), v(M))
            I('v_mul_f32', v(MC), 's70', v(M))
        else:
            I('v_max3_f32', v(M), v(S+0), v(S+1), v(M))
            if CL == 4: I('v_max3_f32', v(M), v(S+2), v(S+3), v(M))
            I('v_mul_f32', v(PLO), 's70', v(M))
            I('v_sub_f32', v(AL), v(MC), v(PLO))
            I('v_mov_b32', v(MC), v(PLO))
            I('v_exp_f32', v(AL), v(AL))
        for j in range(CL):
            I('v_fma_f32', v(S+j), v(S+j), 's70', '-' + v(MC))
        for j in range(CL):
            I('v_exp_f32', v(S+j), v(S+j))
        if c == 0:
            I('v_mov_b32', v(L), v(S+0))
        else:
            I('v_fma_f32', v(L), v(L), v(AL), v(S+0))
            for i in range(8): I('v_mul_f32', v(8+i), v(AL), v(8+i))
        for j in range(CL):
            I('v_cvt_pk_bf16_f32', v(PLO+j), v(S+j), 0)
            I('v_cvt_pk_bf16_f32', v(PHI+j), 0, v(S+j))
        for j in range(1, CL):
            I('v_add_f32', v(L), v(L), v(S+j))
        A.wait_vm('V%d' % c)
        for j in range(CL):
            for d in range(4):
                src = v(VB(c, j)+d)
                I('v_dot2_f32_bf16', v(8+2*d), v(PLO+j), src, v(8+2*d))
                I('v_dot2_f32_bf16', v(9+2*d), v(PHI+j), src, v(9+2*d))
        if c + D < NC: issueV(c+D)
        if c == wo_at: issueWO()
        if c == perm_at:
            A.wait_vm('WO')
            for k, (w0, w1) in enumerate(pairs):
                I('v_perm_b32', v(LO[k]), v(w1), v(w0), 's74')
                I('v_perm_b32', v(HI[k]), v(w1), v(w0), 's75')
    stamp(2)
    def allred4(x, t, op):
        I('v_mov_b32', v(t), v(x))
        I('v_permlane32_swap_b32', v(x), v(t))
        I(op, v(x), v(x), v(t))
        I('v_mov_b32', v(t), v(x))
        I('v_permlane16_swap_b32', v(x), v(t))
        I(op, v(x), v(x), v(t))
    I('v_mov_b32', 'v22', v(MC))
    allred4(22, 23, 'v_max_f32')
    I('v_sub_f32', v(AL), v(MC), 'v22')
    I('v_exp_f32', v(AL), v(AL))
    I('v_lshrrev_b32', 'v25', 6, 'v0')
    I('v_lshlrev_b32', 'v26', 9, 'v25')
    for i in range(8): I('v_mul_f32', v(8+i), v(AL), v(8+i))
    I('v_mul_f32', 'v23', v(AL), v(L))
    dist_reduce(8)
    allred4(23, 24, 'v_add_f32')
    I('v_lshl_add_u32', 'v26', 'v3', 5, 'v26')
    I('v_bfe_u32', 'v27', 'v0', 4, 2)
    I('v_lshl_add_u32', 'v26', 'v27', 3, 'v26')
    I('ds_write_b64', 'v26', 'v[8:9]', mods='offset:%d' % OP)
    I('v_lshlrev_b32', 'v26', 3, 'v25')
    I('ds_write_b64', 'v26', 'v[22:23]', mods='offset:%d' % ML)
    I('v_and_b32', 'v28', 63, 'v0')
    I('v_lshrrev_b32', 'v29', LGR, 'v28')
    I('v_and_b32', 'v28', R - 1, 'v28')
    I('v_lshlrev_b32', 'v26', 4, 'v29')
    I('v_lshlrev_b32', 'v27', 10, 'v29')
    I('v_lshl_add_u32', 'v27', 'v25', LGR + 2, 'v27')
    I('v_lshl_add_u32', 'v27', 'v28', 2, 'v27')
    A.wait_lgkm()
    stamp(3)
    I('s_barrier')
    stamp(4)
    I('ds_read_b128', 'v[20:23]', 'v26', mods='offset:%d' % ML)
    I('ds_read_b32', 'v8', 'v27', mods='offset:%d' % OP)
    I('ds_read_b32', 'v9', 'v27', mods='offset:%d' % (OP + 512))
    A.wait_lgkm()
    def allred_grp(x, t, opname):
        if R == 8:
            I(opname + '_dpp', v(x), v(x), v(x), mods='row_ror:8 row_mask:0xf bank_mask:0xf')
        if R == 32:
            I('v_mov_b32', v(t), v(x))
            I('v_permlane32_swap_b32', v(x), v(t))
            I(opname, v(x), v(x), v(t))
        else:
            allred4(x, t, opname)
    I('v_max_f32', 'v16', 'v20', 'v22')
    allred_grp(16, 24, 'v_max_f32')
    I('v_sub_f32', 'v20', 'v20', 'v16')
    I('v_sub_f32', 'v22', 'v22', 'v16')
    I('v_exp_f32', 'v20', 'v20')
    I('v_exp_f32', 'v22', 'v22')
    I('v_mul_f32', 'v8', 'v20', 'v8')
    I('v_mul_f32', 'v17', 'v20', 'v21')
    I('v_fma_f32', 'v8', 'v22', 'v9', 'v8')
    I('v_fma_f32', 'v17', 'v22', 'v23', 'v17')
    allred_grp(8, 24, 'v_add_f32')
    I('v_mov_b32_dpp', 'v9', 'v8', mods='quad_perm:[1,0,3,2] row_mask:0xf bank_mask:0xf')
    I('v_cvt_pk_bf16_f32', 'v8', 'v8', 'v9')
    for k in range(R // 2):
        I('v_readlane_b32', s(24 + k), 'v8', 2*k)
    allred_grp(17, 24, 'v_add_f32')
    Y = 8
    for kk in range(R // 2):
        for d in range(4):
            k = kk * 4 + d
            I('v_dot2_f32_bf16', v(Y+2*d), s(24+kk), v(LO[k]), (0 if kk == 0 else v(Y+2*d)))
            I('v_dot2_f32_bf16', v(Y+2*d+1), s(24+kk), v(HI[k]), (0 if kk == 0 else v(Y+2*d+1)))
    stamp(5)
    I('v_and_b32', 'v26', 63, 'v0')
    I('v_lshlrev_b32', 'v26', 4, 'v26')
    I('v_lshl_add_u32', 'v26', 'v25', 11, 'v26')
    I('ds_write_b128', 'v26', vr(Y, 4), mods='offset:%d' % YP)
    I('ds_write_b128', 'v26', vr(Y+4, 4), mods='offset:%d' % (YP+1024))
    if W == 4:
        I('v_lshlrev_b32', 'v30', 1, 'v0')
    else:
        I('v_mov_b32', 'v30', 'v0')
    I('v_lshlrev_b32', 'v27', 2, 'v30')
    I('v_bfe_u32', 'v28', 'v30', 2, 6)
    I('v_lshlrev_b32', 'v28', 5, 'v28')
    I('v_lshrrev_b32', 'v29', 8, 'v30')
    I('v_lshl_add_u32', 'v28', 'v29', 4, 'v28')
    I('v_and_b32', 'v29', 3, 'v30')
    I('v_lshl_add_u32', 'v28', 'v29', 2, 'v28')
    A.wait_lgkm()
    I('s_barrier')
    stamp(6)
    T0 = KV0
    if W == 16:
        I('v_cmp_gt_u32', 'vcc', 512, 'v0')
        I('s_and_saveexec_b64', 's[80:81]', 'vcc')
        I('s_cbranch_execz', 'L_k1_ml')
    if W == 4:
        for w in range(W):
            I('ds_read_b64', vr(T0+2*w, 2), 'v27', mods='offset:%d' % (YP + w*2048))
        A.wait_lgkm()
        n = 2 * W
        while n > 2:
            n //= 2
            for w in range(n): I('v_add_f32', v(T0+w), v(T0+w), v(T0+n+w))
        I('buffer_store_dwordx2', vr(T0, 2), 'v28', 's[44:47]', 's72', mods='offen')
    else:
        for w in range(W):
            I('ds_read_b32', v(T0+w), 'v27', mods='offset:%d' % (YP + w*2048))
        A.wait_lgkm()
        n = W
        while n > 1:
            n //= 2
            for w in range(n): I('v_add_f32', v(T0+w), v(T0+w), v(T0+n+w))
        I('buffer_store_dword', v(T0), 'v28', 's[44:47]', 's72', mods='offen')
    if W == 16:
        A.label('L_k1_ml')
        I('s_mov_b64', 'exec', 's[80:81]')
    if stamps:
        A.wait_vm_all()
        stamp(7)
        I('v_and_b32', 'v40', 63, 'v0')
        I('v_cmp_eq_u32', 'vcc', 0, 'v40')
        I('s_and_saveexec_b64', 's[80:81]', 'vcc')
        for k in range(8): I('v_mov_b32', v(48+k), s(84+2*k))
        I('v_lshrrev_b32', 'v41', 6, 'v0')
        I('v_lshlrev_b32', 'v41', 5, 'v41')
        I('s_lshl_b32', 's82', 's2', 9)
        I('s_add_u32', 's82', 's82', 1048576)
        I('s_mov_b32', 's46', 4194304)
        I('buffer_store_dwordx4', 'v[48:51]', 'v41', 's[44:47]', 's82', mods='offen')
        I('buffer_store_dwordx4', 'v[52:55]', 'v41', 's[44:47]', 's82', mods='offen offset:16')
        I('s_mov_b64', 'exec', 's[80:81]')
    I('v_cmp_eq_u32', 'vcc', {4: 192, 8: 448, 16: 512}[W], 'v0')
    I('s_and_saveexec_b64', 's[80:81]', 'vcc')
    I('s_cbranch_execz', 'L_k1_end')
    I('v_mov_b32', 'v28', 0)
    I('buffer_store_dwordx2', 'v[16:17]', 'v28', 's[44:47]', 's73', mods='offen')
    A.label('L_k1_end')
    I('s_endpgm')
    return A.text(), LDS1, NV

def gen(W=16, **kw):
    import gen1
    k1txt, LDS1, NV = gen_k1(W=W, **kw)
    full = gen1.gen()
    k2txt = full[full.index('.globl concat_heads_combine_kernel'):full.index('.section .rodata')]
    head = HEADER.rstrip('\n') + '\n'
    head += '; @launch kernel=%s grid=(256,1,1) block=(%d,1,1) lds=%d\n' % (K1, W*64, LDS1)
    head += '; @launch kernel=%s grid=(32,1,1) block=(256,1,1) lds=4096\n' % K2
    head += '.amdgcn_target "amdgcn-amd-amdhsa--gfx950"\n.text\n'
    tail = '''.section .rodata,"a"
.p2align 6
.amdhsa_kernel %s
  .amdhsa_next_free_vgpr %d
  .amdhsa_next_free_sgpr 102
  .amdhsa_accum_offset %d
  .amdhsa_group_segment_fixed_size 0
  .amdhsa_kernarg_size 104
  .amdhsa_user_sgpr_count 2
  .amdhsa_user_sgpr_kernarg_segment_ptr 1
  .amdhsa_system_sgpr_workgroup_id_x 1
.end_amdhsa_kernel
.p2align 6
.amdhsa_kernel %s
  .amdhsa_next_free_vgpr 40
  .amdhsa_next_free_sgpr 32
  .amdhsa_accum_offset 40
  .amdhsa_group_segment_fixed_size 0
  .amdhsa_kernarg_size 104
  .amdhsa_user_sgpr_count 2
  .amdhsa_user_sgpr_kernarg_segment_ptr 1
  .amdhsa_system_sgpr_workgroup_id_x 1
.end_amdhsa_kernel
''' % (K1, NV, NV, K2)
    return head + k1txt + k2txt + tail, LDS1

if __name__ == '__main__':
    import argparse
    ap = argparse.ArgumentParser()
    ap.add_argument('--W', type=int, default=16)
    ap.add_argument('--CL', type=int, default=4)
    ap.add_argument('--D', type=int, default=2)
    ap.add_argument('--kvmod', default='nt')
    ap.add_argument('--wmod', default='')
    ap.add_argument('--rot', type=int, default=3)
    ap.add_argument('--exp', default='')
    ap.add_argument('--wo_at', type=int, default=2)
    ap.add_argument('--perm_at', type=int, default=5)
    ap.add_argument('--prio', action='store_true')
    ap.add_argument('-o', default='cdna_kernels/%s.s' % NAME)
    a = ap.parse_args()
    txt, lds = gen(W=a.W, CL=a.CL, D=a.D, kvmod=a.kvmod, wmod=a.wmod, rot=a.rot, exp=a.exp, wo_at=a.wo_at, perm_at=a.perm_at, prio=a.prio)
    open(a.o, 'w').write(txt)
    print(lds)
```

```python
import sys, math
sys.path.insert(0, 'gen')
from asmlib import *

NAME = 'concat_heads__mha_block_cached__gqa_block_cached__decode'
HEADER = open('cdna_kernels/%s.s.ref' % NAME).read().split('; @launch')[0]
K1 = NAME + '_kernel'
K2 = 'concat_heads_combine_kernel'

def gen_k1(W=16, CL=4, D=2, kvmod='nt', wmod='', rot=3, exp='', wo_at=2, perm_at=5, prio=False, NE=0, rolled=False):
    A = Asm()
    I = A.I
    LGW = {4: 2, 8: 3, 16: 4}[W]
    NW = 128 // W
    R = NW
    LGR = {8: 3, 16: 4, 32: 5}[R]
    QS = W * 512
    OP = QS + W * 256
    ML = OP + W * 512
    YP = ML + 1024
    LDS1 = YP + W * 2048
    NC = (512 // W) // CL
    LGC = {2: 11, 4: 12, 8: 13}[CL]
    CSTR = 1024 * CL * W
    stamps = 'stamp' in exp
    if W == 16:
        WB0 = 96; KV0 = 32; NV = 128
        assert D * CL * 8 <= 64
    elif W == 8:
        WB0 = 32; KV0 = 96; NV = 256
        assert D * CL * 8 <= 160
    else:
        WB0 = 32; KV0 = 160; NV = 256
        assert D * CL * 8 <= 64
    WBUF = lambda j: WB0 + 4*j
    def KB(c, j): return KV0 + ((c % D) * 2 * CL + j) * 4
    def VB(c, j): return KV0 + ((c % D) * 2 * CL + CL + j) * 4
    def stamp(k):
        if not stamps: return
        I('s_memrealtime', sr(84 + 2*k, 2))
        A.wait_lgkm()
    A.raw('.globl %s' % K1)
    A.raw('.p2align 8')
    A.raw('.type %s,@function' % K1)
    A.label(K1)
    I('s_cmp_ge_u32', 's2', 256)
    I('s_cbranch_scc1', 'L_k1_end')
    stamp(0)
    if NE:
        NO = 2 * NC - NE
        I('s_and_b32', 's3', 's2', 7)
        I('s_lshr_b32', 's9', 's2', 3)
        I('s_and_b32', 's10', 's2', 1)
        I('s_and_b32', 's11', 's9', 1)
        I('s_lshl_b32', 's5', 's10', 1)
        I('s_add_u32', 's5', 's5', 's11')
        I('s_lshr_b32', 's4', 's3', 1)
        I('s_lshl_b32', 's4', 's4', 4)
        I('s_lshr_b32', 's9', 's9', 1)
        I('s_add_u32', 's4', 's4', 's9')
    else:
        I('s_and_b32', 's3', 's2', 7)
        I('s_lshr_b32', 's4', 's2', 3)
        I('s_and_b32', 's5', 's4', 3)
        I('s_lshr_b32', 's4', 's2', 5)
        I('s_lshl_b32', 's4', 's4', 3)
        I('s_add_u32', 's4', 's4', 's3')
    I('s_lshr_b32', 's6', 's4', 5)
    I('s_and_b32', 's7', 's4', 31)
    I('s_mul_i32', 's8', 's6', 40)
    I('s_load_dwordx4', 's[12:15]', 's[0:1]', 's8')
    I('s_load_dwordx4', 's[16:19]', 's[0:1]', 's8', mods='offset:16')
    I('s_load_dwordx2', 's[20:21]', 's[0:1]', 's8', mods='offset:32')
    I('s_load_dwordx2', 's[22:23]', 's[0:1]', 96)
    I('v_lshrrev_b32', 'v18', 4, 'v0')
    I('v_lshlrev_b32', 'v19', LGR + 1, 'v18')
    I('v_lshlrev_b32', 'v18', 13 + LGR, 'v18')
    I('v_and_b32', 'v3', 15, 'v0')
    I('v_lshl_add_u32', 'v18', 'v3', 4, 'v18')
    I('v_and_b32', 'v17', 63, 'v0')
    I('v_lshlrev_b32', 'v17', 4, 'v17')
    I('v_lshrrev_b32', 'v16', 6, 'v0')
    I('v_lshl_add_u32', 'v1', 'v16', LGC, 'v17')
    I('v_lshl_add_u32', 'v2', 'v16', 10 + LGR, 'v17')
    I('s_lshl_b32', 's48', 's7', 21)
    if NE:
        I('s_mul_i32', 's49', 's11', NE)
        I('s_mul_i32', 's51', 's11', NO)
        I('s_add_u32', 's51', 's51', 2 * NE)
        I('s_cmp_eq_u32', 's10', 0)
        I('s_cselect_b32', 's49', 's49', 's51')
        I('s_mul_i32', 's49', 's49', CSTR)
    else:
        I('s_lshl_b32', 's49', 's5', 19)
    I('s_add_u32', 's50', 's48', 's49')
    if rot == 3:
        I('s_mul_i32', 's52', 's3', max(NC // 8, 1))
    elif rot == 4:
        I('s_mul_i32', 's52', 's2', 11)
        I('s_lshr_b32', 's53', 's2', 4)
        I('s_add_u32', 's52', 's52', 's53')
    elif rot == 5:
        I('v_readfirstlane_b32', 's54', 'v16')
        I('s_mul_i32', 's52', 's2', 11)
        I('s_lshr_b32', 's53', 's2', 4)
        I('s_add_u32', 's52', 's52', 's53')
        I('s_mul_i32', 's54', 's54', 5)
        I('s_add_u32', 's52', 's52', 's54')
    elif rot == 6:
        I('v_readfirstlane_b32', 's54', 'v16')
        I('s_mul_i32', 's52', 's54', 2)
    else:
        I('s_mov_b32', 's52', 0)
    I('s_lshl_b32', 's60', 's7', 8)
    I('s_lshl_b32', 's68', 's7', 17)
    I('s_mov_b32', 's70', '0x%08x' % f2u(math.log2(math.e) / math.sqrt(128.0)))
    I('s_lshl_b32', 's71', 's4', 2)
    I('s_add_u32', 's71', 's71', 's5')
    I('s_lshl_b32', 's72', 's71', 11)
    I('s_lshl_b32', 's73', 's71', 3)
    I('s_add_u32', 's73', 's73', 524288)
    I('s_mov_b32', 's74', '0x05040100')
    I('s_mov_b32', 's75', '0x07060302')
    A.wait_lgkm()
    def srd(d, lo, nbytes):
        I('s_mov_b32', s(d), s(lo))
        I('s_mov_b32', s(d+1), s(lo+1))
        I('s_mov_b32', s(d+2), nbytes)
        I('s_mov_b32', s(d+3), '0x00020000')
    srd(24, 12, 1024)
    srd(36, 18, 4194304)
    XR = 20 if W >= 8 else 224
    for k in range(NW // 8):
        I('buffer_load_dwordx4', vr(XR + 4*k, 4), 'v19', 's[24:27]', 0, mods='offen offset:%d' % (16*k), tag='wq')
    for j in range(NW):
        I('buffer_load_dwordx4', vr(WBUF(j), 4), 'v18', 's[36:39]', 's60', mods=('offen ' + wmod).strip(), tag='wq')
        if j < NW - 1: I('s_add_u32', 's60', 's60', 8192)
    srd(28, 14, 67108864)
    srd(32, 16, 67108864)
    srd(40, 20, 4194304)
    srd(44, 22, 526336)
    if prio: I('s_barrier')
    def issue(c, srdname, bufs, tag):
        if NE:
            I('s_add_u32', 's53', 's50', c * CSTR)
        else:
            I('s_add_u32', 's53', 's52', c)
            I('s_and_b32', 's53', 's53', NC - 1)
            I('s_mul_i32', 's53', 's53', CSTR)
            I('s_add_u32', 's53', 's53', 's50')
        for j in range(CL):
            off = j * 1024
            if off >= 4096 and off % 4096 == 0: I('s_add_u32', 's53', 's53', 4096)
            I('buffer_load_dwordx4', vr(bufs(c, j), 4), 'v1', srdname, 's53', mods=('offen offset:%d ' % (off % 4096) + kvmod).strip(), tag=tag)
    def issueK(c): issue(c, 's[28:31]', KB, 'K%d' % c)
    def issueV(c): issue(c, 's[32:35]', VB, 'V%d' % c)
    def issueWO():
        for j in range(NW):
            if j and j % 4 == 0: I('s_add_u32', 's68', 's68', 4096)
            I('buffer_load_dwordx4', vr(WBUF(j), 4), 'v2', 's[40:43]', 's68', mods=('offen offset:%d ' % (1024*(j % 4)) + wmod).strip(), tag='WO')
    for c in range(D):
        issueK(c); issueV(c)
    def dist_reduce(a):
        for i in range(4): I('v_permlane32_swap_b32', v(a+i), v(a+i+4))
        for i in range(4): I('v_add_f32', v(a+i), v(a+i), v(a+i+4))
        for i in range(2): I('v_permlane16_swap_b32', v(a+i), v(a+i+2))
        for i in range(2): I('v_add_f32', v(a+i), v(a+i), v(a+i+2))
    A.wait_vm('wq')
    for j in range(NW):
        xd = v(XR + j//2)
        tl, th = (4, 5) if j % 2 == 0 else (6, 7)
        if j % 2 == 0:
            I('v_and_b32', v(tl), '0xffff', xd)
            I('v_lshlrev_b32', v(th), 16, xd)
        else:
            I('v_lshrrev_b32', v(tl), 16, xd)
            I('v_and_b32', v(th), '0xffff0000', xd)
        for d in range(4):
            src = v(WBUF(j)+d)
            I('v_dot2_f32_bf16', v(8+2*d), v(tl), src, (0 if j == 0 else v(8+2*d)))
            I('v_dot2_f32_bf16', v(9+2*d), v(th), src, (0 if j == 0 else v(9+2*d)))
    dist_reduce(8)
    I('v_lshrrev_b32', 'v16', 6, 'v0')
    I('v_lshlrev_b32', 'v16', 9, 'v16')
    I('v_lshl_add_u32', 'v16', 'v3', 5, 'v16')
    I('v_bfe_u32', 'v17', 'v0', 4, 2)
    I('v_lshl_add_u32', 'v16', 'v17', 3, 'v16')
    I('ds_write_b64', 'v16', 'v[8:9]')
    KW = W // 4
    I('v_mul_u32_u24', 'v18', KW * 512, 'v17')
    I('v_lshl_add_u32', 'v18', 'v3', 5, 'v18')
    A.wait_lgkm()
    I('s_barrier')
    I('ds_read_b128', 'v[8:11]', 'v18', mods='offset:0')
    I('ds_read_b128', 'v[12:15]', 'v18', mods='offset:16')
    for k in range(1, KW):
        I('ds_read_b128', 'v[20:23]', 'v18', mods='offset:%d' % (512*k))
        I('ds_read_b128', 'v[24:27]', 'v18', mods='offset:%d' % (512*k+16))
        A.wait_lgkm()
        for i in range(8): I('v_add_f32', v(8+i), v(8+i), v(20+i))
    dist_reduce(8)
    I('v_cvt_pk_bf16_f32', 'v8', 'v8', 'v9')
    I('v_lshrrev_b32', 'v18', 6, 'v0')
    I('v_lshlrev_b32', 'v18', 8, 'v18')
    I('v_lshl_add_u32', 'v18', 'v3', 4, 'v18')
    I('v_lshl_add_u32', 'v19', 'v17', 2, 'v18')
    I('ds_write_b32', 'v19', 'v8', mods='offset:%d' % QS)
    A.wait_lgkm()
    I('ds_read_b128', 'v[4:7]', 'v18', mods='offset:%d' % QS)
    for i in range(8): I('v_mov_b32', v(8+i), 0)
    A.wait_lgkm()
    stamp(1)
    M, MC, L, AL = 16, 17, 18, 19
    S, PLO, PHI = 20, 24, 28
    if CL == 8:
        assert W == 8 and D == 2
        S, PLO, PHI = 224, 232, 240
    pairs = [(WBUF(j)+d, WBUF(j+1)+d) for j in range(0, NW, 2) for d in range(4)]
    LO = {}; HI = {}
    for k, (w0, w1) in enumerate(pairs):
        LO[k] = 2 if k == 0 else pairs[k-1][0]
        HI[k] = w1
    def chunk(c, NC):
        A.comment('chunk %d' % c)
        A.wait_vm('K%d' % c)
        for d in range(4):
            for j in range(CL):
                I('v_dot2_f32_bf16', v(S+j), v(4+d), v(KB(c, j)+d), (0 if d == 0 else v(S+j)))
        if c + D < NC: issueK(c+D)
        for step in (8, 4, 2, 1):
            for j in range(CL):
                I('v_add_f32_dpp', v(S+j), v(S+j), v(S+j), mods='row_ror:%d row_mask:0xf bank_mask:0xf' % step)
        if c == 0:
            I('v_max_f32', v(M), v(S+0), v(S+1))
            for j in range(2, CL, 2): I('v_max3_f32', v(M), v(S+j), v(S+j+1), v(M))
            I('v_mul_f32', v(MC), 's70', v(M))
        else:
            for j in range(0, CL, 2): I('v_max3_f32', v(M), v(S+j), v(S+j+1), v(M))
            I('v_mul_f32', v(PLO), 's70', v(M))
            I('v_sub_f32', v(AL), v(MC), v(PLO))
            I('v_mov_b32', v(MC), v(PLO))
            I('v_exp_f32', v(AL), v(AL))
        for j in range(CL):
            I('v_fma_f32', v(S+j), v(S+j), 's70', '-' + v(MC))
        for j in range(CL):
            I('v_exp_f32', v(S+j), v(S+j))
        if c == 0:
            I('v_mov_b32', v(L), v(S+0))
        else:
            I('v_fma_f32', v(L), v(L), v(AL), v(S+0))
            for i in range(8): I('v_mul_f32', v(8+i), v(AL), v(8+i))
        for j in range(CL):
            I('v_cvt_pk_bf16_f32', v(PLO+j), v(S+j), 0)
            I('v_cvt_pk_bf16_f32', v(PHI+j), 0, v(S+j))
        for j in range(1, CL):
            I('v_add_f32', v(L), v(L), v(S+j))
        A.wait_vm('V%d' % c)
        for j in range(CL):
            for d in range(4):
                src = v(VB(c, j)+d)
                I('v_dot2_f32_bf16', v(8+2*d), v(PLO+j), src, v(8+2*d))
                I('v_dot2_f32_bf16', v(9+2*d), v(PHI+j), src, v(9+2*d))
        if c + D < NC: issueV(c+D)
        if c == wo_at: issueWO()
        if c == perm_at:
            A.wait_vm('WO')
            for k, (w0, w1) in enumerate(pairs):
                I('v_perm_b32', v(LO[k]), v(w1), v(w0), 's74')
                I('v_perm_b32', v(HI[k]), v(w1), v(w0), 's75')
    if NE:
        for c in range(NO - D): chunk(c, NE)
        I('s_cmp_eq_u32', 's10', 0)
        I('s_cbranch_scc1', 'L_even')
        saved = list(A.vm)
        for c in range(NO - D, NO): chunk(c, NO)
        I('s_branch', 'L_tail')
        A.label('L_even')
        A.vm = saved
        A.nop(4)
        for c in range(NO - D, NE): chunk(c, NE)
        A.label('L_tail')
        A.nop(4)
    elif rolled:
        assert D == 2 and rot == 0
        I('v_mov_b32', v(M), '0xf149f2ca')
        I('v_mov_b32', v(MC), '0xf149f2ca')
        I('v_mov_b32', v(L), 0)
        I('s_add_u32', 's55', 's50', 2 * CSTR)
        I('s_mov_b32', 's56', 0)
        def body(g, issue_next, wk, wv):
            I('s_waitcnt', 'vmcnt(%d)' % wk)
            for d in range(4):
                for j in range(CL):
                    I('v_dot2_f32_bf16', v(S+j), v(4+d), v(KB(g, j)+d), (0 if d == 0 else v(S+j)))
            if issue_next:
                for j in range(CL):
                    I('buffer_load_dwordx4', vr(KB(g, j), 4), 'v1', 's[28:31]', 's55', mods=('offen offset:%d ' % (1024*j) + kvmod).strip())
            for step in (8, 4, 2, 1):
                for j in range(CL):
                    I('v_add_f32_dpp', v(S+j), v(S+j), v(S+j), mods='row_ror:%d row_mask:0xf bank_mask:0xf' % step)
            for j in range(0, CL, 2): I('v_max3_f32', v(M), v(S+j), v(S+j+1), v(M))
            I('v_mul_f32', v(PLO), 's70', v(M))
            I('v_sub_f32', v(AL), v(MC), v(PLO))
            I('v_mov_b32', v(MC), v(PLO))
            I('v_exp_f32', v(AL), v(AL))
            for j in range(CL):
                I('v_fma_f32', v(S+j), v(S+j), 's70', '-' + v(MC))
            for j in range(CL):
                I('v_exp_f32', v(S+j), v(S+j))
            I('v_fma_f32', v(L), v(L), v(AL), v(S+0))
            for i in range(8): I('v_mul_f32', v(8+i), v(AL), v(8+i))
            for j in range(CL):
                I('v_cvt_pk_bf16_f32', v(PLO+j), v(S+j), 0)
                I('v_cvt_pk_bf16_f32', v(PHI+j), 0, v(S+j))
            for j in range(1, CL):
                I('v_add_f32', v(L), v(L), v(S+j))
            I('s_waitcnt', 'vmcnt(%d)' % wv)
            for j in range(CL):
                for d in range(4):
                    src = v(VB(g, j)+d)
                    I('v_dot2_f32_bf16', v(8+2*d), v(PLO+j), src, v(8+2*d))
                    I('v_dot2_f32_bf16', v(9+2*d), v(PHI+j), src, v(9+2*d))
            if issue_next:
                for j in range(CL):
                    I('buffer_load_dwordx4', vr(VB(g, j), 4), 'v1', 's[32:35]', 's55', mods=('offen offset:%d ' % (1024*j) + kvmod).strip())
                I('s_add_u32', 's55', 's55', CSTR)
        A.label('L_loop')
        body(0, True, 3*CL, 3*CL)
        body(1, True, 3*CL, 3*CL)
        I('s_cmp_lg_u32', 's56', wo_at // 2)
        I('s_cbranch_scc1', 'L_nowo')
        issueWO()
        A.label('L_nowo')
        I('s_cmp_lg_u32', 's56', perm_at // 2)
        I('s_cbranch_scc1', 'L_noperm')
        I('s_waitcnt', 'vmcnt(%d)' % (4*CL))
        for k, (w0, w1) in enumerate(pairs):
            I('v_perm_b32', v(LO[k]), v(w1), v(w0), 's74')
            I('v_perm_b32', v(HI[k]), v(w1), v(w0), 's75')
        A.label('L_noperm')
        I('s_add_u32', 's56', 's56', 1)
        I('s_cmp_lt_u32', 's56', NC // 2 - 1)
        I('s_cbranch_scc1', 'L_loop')
        body(0, False, 3*CL, 2*CL)
        body(1, False, CL, 0)
        A.vm = []
    else:
        for c in range(NC): chunk(c, NC)
    stamp(2)
    def allred4(x, t, op):
        I('v_mov_b32', v(t), v(x))
        I('v_permlane32_swap_b32', v(x), v(t))
        I(op, v(x), v(x), v(t))
        I('v_mov_b32', v(t), v(x))
        I('v_permlane16_swap_b32', v(x), v(t))
        I(op, v(x), v(x), v(t))
    I('v_mov_b32', 'v22', v(MC))
    allred4(22, 23, 'v_max_f32')
    I('v_sub_f32', v(AL), v(MC), 'v22')
    I('v_exp_f32', v(AL), v(AL))
    I('v_lshrrev_b32', 'v25', 6, 'v0')
    I('v_lshlrev_b32', 'v26', 9, 'v25')
    for i in range(8): I('v_mul_f32', v(8+i), v(AL), v(8+i))
    I('v_mul_f32', 'v23', v(AL), v(L))
    dist_reduce(8)
    allred4(23, 24, 'v_add_f32')
    I('v_lshl_add_u32', 'v26', 'v3', 5, 'v26')
    I('v_bfe_u32', 'v27', 'v0', 4, 2)
    I('v_lshl_add_u32', 'v26', 'v27', 3, 'v26')
    I('ds_write_b64', 'v26', 'v[8:9]', mods='offset:%d' % OP)
    I('v_lshlrev_b32', 'v26', 3, 'v25')
    I('ds_write_b64', 'v26', 'v[22:23]', mods='offset:%d' % ML)
    I('v_and_b32', 'v28', 63, 'v0')
    I('v_lshrrev_b32', 'v29', LGR, 'v28')
    I('v_and_b32', 'v28', R - 1, 'v28')
    I('v_lshlrev_b32', 'v26', 4, 'v29')
    I('v_lshlrev_b32', 'v27', 10, 'v29')
    I('v_lshl_add_u32', 'v27', 'v25', LGR + 2, 'v27')
    I('v_lshl_add_u32', 'v27', 'v28', 2, 'v27')
    A.wait_lgkm()
    stamp(3)
    I('s_barrier')
    stamp(4)
    I('ds_read_b128', 'v[20:23]', 'v26', mods='offset:%d' % ML)
    I('ds_read_b32', 'v8', 'v27', mods='offset:%d' % OP)
    I('ds_read_b32', 'v9', 'v27', mods='offset:%d' % (OP + 512))
    A.wait_lgkm()
    def allred_grp(x, t, opname):
        if R == 8:
            I(opname + '_dpp', v(x), v(x), v(x), mods='row_ror:8 row_mask:0xf bank_mask:0xf')
        if R == 32:
            I('v_mov_b32', v(t), v(x))
            I('v_permlane32_swap_b32', v(x), v(t))
            I(opname, v(x), v(x), v(t))
        else:
            allred4(x, t, opname)
    I('v_max_f32', 'v16', 'v20', 'v22')
    allred_grp(16, 24, 'v_max_f32')
    I('v_sub_f32', 'v20', 'v20', 'v16')
    I('v_sub_f32', 'v22', 'v22', 'v16')
    I('v_exp_f32', 'v20', 'v20')
    I('v_exp_f32', 'v22', 'v22')
    I('v_mul_f32', 'v8', 'v20', 'v8')
    I('v_mul_f32', 'v17', 'v20', 'v21')
    I('v_fma_f32', 'v8', 'v22', 'v9', 'v8')
    I('v_fma_f32', 'v17', 'v22', 'v23', 'v17')
    allred_grp(8, 24, 'v_add_f32')
    I('v_mov_b32_dpp', 'v9', 'v8', mods='quad_perm:[1,0,3,2] row_mask:0xf bank_mask:0xf')
    I('v_cvt_pk_bf16_f32', 'v8', 'v8', 'v9')
    for k in range(R // 2):
        I('v_readlane_b32', s(24 + k), 'v8', 2*k)
    allred_grp(17, 24, 'v_add_f32')
    Y = 8
    for kk in range(R // 2):
        for d in range(4):
            k = kk * 4 + d
            I('v_dot2_f32_bf16', v(Y+2*d), s(24+kk), v(LO[k]), (0 if kk == 0 else v(Y+2*d)))
            I('v_dot2_f32_bf16', v(Y+2*d+1), s(24+kk), v(HI[k]), (0 if kk == 0 else v(Y+2*d+1)))
    stamp(5)
    I('v_and_b32', 'v26', 63, 'v0')
    I('v_lshlrev_b32', 'v26', 4, 'v26')
    I('v_lshl_add_u32', 'v26', 'v25', 11, 'v26')
    I('ds_write_b128', 'v26', vr(Y, 4), mods='offset:%d' % YP)
    I('ds_write_b128', 'v26', vr(Y+4, 4), mods='offset:%d' % (YP+1024))
    if W == 4:
        I('v_lshlrev_b32', 'v30', 1, 'v0')
    else:
        I('v_mov_b32', 'v30', 'v0')
    I('v_lshlrev_b32', 'v27', 2, 'v30')
    I('v_bfe_u32', 'v28', 'v30', 2, 6)
    I('v_lshlrev_b32', 'v28', 5, 'v28')
    I('v_lshrrev_b32', 'v29', 8, 'v30')
    I('v_lshl_add_u32', 'v28', 'v29', 4, 'v28')
    I('v_and_b32', 'v29', 3, 'v30')
    I('v_lshl_add_u32', 'v28', 'v29', 2, 'v28')
    A.wait_lgkm()
    I('s_barrier')
    stamp(6)
    T0 = KV0
    if W == 16:
        I('v_cmp_gt_u32', 'vcc', 512, 'v0')
        I('s_and_saveexec_b64', 's[80:81]', 'vcc')
        I('s_cbranch_execz', 'L_k1_ml')
    if W == 4:
        for w in range(W):
            I('ds_read_b64', vr(T0+2*w, 2), 'v27', mods='offset:%d' % (YP + w*2048))
        A.wait_lgkm()
        n = 2 * W
        while n > 2:
            n //= 2
            for w in range(n): I('v_add_f32', v(T0+w), v(T0+w), v(T0+n+w))
        I('buffer_store_dwordx2', vr(T0, 2), 'v28', 's[44:47]', 's72', mods='offen')
    else:
        for w in range(W):
            I('ds_read_b32', v(T0+w), 'v27', mods='offset:%d' % (YP + w*2048))
        A.wait_lgkm()
        n = W
        while n > 1:
            n //= 2
            for w in range(n): I('v_add_f32', v(T0+w), v(T0+w), v(T0+n+w))
        I('buffer_store_dword', v(T0), 'v28', 's[44:47]', 's72', mods='offen')
    if W == 16:
        A.label('L_k1_ml')
        I('s_mov_b64', 'exec', 's[80:81]')
    if stamps:
        A.wait_vm_all()
        stamp(7)
        I('v_and_b32', 'v40', 63, 'v0')
        I('v_cmp_eq_u32', 'vcc', 0, 'v40')
        I('s_and_saveexec_b64', 's[80:81]', 'vcc')
        for k in range(8): I('v_mov_b32', v(48+k), s(84+2*k))
        I('v_lshrrev_b32', 'v41', 6, 'v0')
        I('v_lshlrev_b32', 'v41', 5, 'v41')
        I('s_lshl_b32', 's82', 's2', 9)
        I('s_add_u32', 's82', 's82', 1048576)
        I('s_mov_b32', 's46', 4194304)
        I('buffer_store_dwordx4', 'v[48:51]', 'v41', 's[44:47]', 's82', mods='offen')
        I('buffer_store_dwordx4', 'v[52:55]', 'v41', 's[44:47]', 's82', mods='offen offset:16')
        I('s_mov_b64', 'exec', 's[80:81]')
    I('v_cmp_eq_u32', 'vcc', {4: 192, 8: 448, 16: 512}[W], 'v0')
    I('s_and_saveexec_b64', 's[80:81]', 'vcc')
    I('s_cbranch_execz', 'L_k1_end')
    I('v_mov_b32', 'v28', 0)
    I('buffer_store_dwordx2', 'v[16:17]', 'v28', 's[44:47]', 's73', mods='offen')
    A.label('L_k1_end')
    I('s_endpgm')
    return A.text(), LDS1, NV

def gen(W=16, **kw):
    import gen1
    k1txt, LDS1, NV = gen_k1(W=W, **kw)
    full = gen1.gen()
    k2txt = full[full.index('.globl concat_heads_combine_kernel'):full.index('.section .rodata')]
    head = HEADER.rstrip('\n') + '\n'
    head += '; @launch kernel=%s grid=(256,1,1) block=(%d,1,1) lds=%d\n' % (K1, W*64, LDS1)
    head += '; @launch kernel=%s grid=(32,1,1) block=(256,1,1) lds=4096\n' % K2
    head += '.amdgcn_target "amdgcn-amd-amdhsa--gfx950"\n.text\n'
    tail = '''.section .rodata,"a"
.p2align 6
.amdhsa_kernel %s
  .amdhsa_next_free_vgpr %d
  .amdhsa_next_free_sgpr 102
  .amdhsa_accum_offset %d
  .amdhsa_group_segment_fixed_size 0
  .amdhsa_kernarg_size 104
  .amdhsa_user_sgpr_count 2
  .amdhsa_user_sgpr_kernarg_segment_ptr 1
  .amdhsa_system_sgpr_workgroup_id_x 1
.end_amdhsa_kernel
.p2align 6
.amdhsa_kernel %s
  .amdhsa_next_free_vgpr 40
  .amdhsa_next_free_sgpr 32
  .amdhsa_accum_offset 40
  .amdhsa_group_segment_fixed_size 0
  .amdhsa_kernarg_size 104
  .amdhsa_user_sgpr_count 2
  .amdhsa_user_sgpr_kernarg_segment_ptr 1
  .amdhsa_system_sgpr_workgroup_id_x 1
.end_amdhsa_kernel
''' % (K1, NV, NV, K2)
    return head + k1txt + k2txt + tail, LDS1

if __name__ == '__main__':
    import argparse
    ap = argparse.ArgumentParser()
    ap.add_argument('--W', type=int, default=16)
    ap.add_argument('--CL', type=int, default=4)
    ap.add_argument('--D', type=int, default=2)
    ap.add_argument('--kvmod', default='nt')
    ap.add_argument('--wmod', default='')
    ap.add_argument('--rot', type=int, default=3)
    ap.add_argument('--exp', default='')
    ap.add_argument('--wo_at', type=int, default=2)
    ap.add_argument('--perm_at', type=int, default=5)
    ap.add_argument('--prio', action='store_true')
    ap.add_argument('--NE', type=int, default=0)
    ap.add_argument('--rolled', action='store_true')
    ap.add_argument('-o', default='cdna_kernels/%s.s' % NAME)
    a = ap.parse_args()
    txt, lds = gen(W=a.W, CL=a.CL, D=a.D, kvmod=a.kvmod, wmod=a.wmod, rot=a.rot, exp=a.exp, wo_at=a.wo_at, perm_at=a.perm_at, prio=a.prio, NE=a.NE, rolled=a.rolled)
    open(a.o, 'w').write(txt)
    print(lds)
```
